```python
import torch

def _softmax(x, axis=-1):
    return torch.softmax(x, dim=axis)
def _gelu(x):
    return torch.nn.functional.gelu(x, approximate="tanh")
def _silu(x):
    return torch.nn.functional.silu(x)
def _sigmoid(x):
    return torch.sigmoid(x)
def _layernorm(x, axis=-1, eps=1e-5):
    m = x.mean(dim=axis, keepdim=True)
    v = x.var(dim=axis, keepdim=True, unbiased=False)
    return (x - m) / torch.sqrt(v + eps)
def _scatter_add(tgt, idx, src, axis=0):
    return tgt.clone().index_add_(axis, idx, src)
def _segment_sum(src, seg, n):
    out = torch.zeros((n,) + src.shape[1:], dtype=src.dtype)
    return out.index_add_(0, seg, src)
def _pad(x, pw):
    flat = tuple(v for pair in reversed(pw) for v in pair)
    return torch.nn.functional.pad(x, flat)

kernel_name = 'gated_mix__mha_block__glu_gated_bilinear__prompt'

def setup_inputs():

    _w = (lambda a: (lambda t: t.to(torch.bfloat16) if t.is_floating_point() else t)(torch.as_tensor(a)))
    def _A_setup():
        B, S, D, H = 1, 2048, 576, 32
        return {
            "x": _w((lambda *s: torch.randn(*s, dtype=torch.bfloat16) * 0.05)(B, S, D)),
            "wqkv": _w((lambda *s: torch.randn(*s, dtype=torch.bfloat16) * 0.8)(D, 3 * D)),
            "wo": _w((lambda *s: torch.randn(*s, dtype=torch.bfloat16) * 0.05)(D, D)),
        }
    _A_in = _A_setup()

    def _B_setup():
        B, S, D, F = 1, 2048, 576, 4608
        return {
            "x": _w((lambda *s: torch.randn(*s, dtype=torch.bfloat16) * 0.05)(B, S, D)),
            "w_gate": _w((lambda *s: torch.randn(*s, dtype=torch.bfloat16) * 3.2)(D, F) * (D ** -0.5)),
            "w_up": _w((lambda *s: torch.randn(*s, dtype=torch.bfloat16) * 3.2)(D, F) * (D ** -0.5)),
            "w_down": _w((lambda *s: torch.randn(*s, dtype=torch.bfloat16) * 3.2)(F, D) * (F ** -0.5)),
        }
    _B_in = _B_setup()

    return {
        "A_x": _A_in["x"],
        "A_wqkv": _A_in["wqkv"],
        "A_wo": _A_in["wo"],
        "B_x": _B_in["x"],
        "B_w_gate": _B_in["w_gate"],
        "B_w_up": _B_in["w_up"],
        "B_w_down": _B_in["w_down"],
        "gate_w": _w((lambda *s: torch.randn(*s, dtype=torch.bfloat16) * 0.05)(576) * 16.0),
    }

def reference(A_x, A_wqkv, A_wo, B_x, B_w_gate, B_w_up, B_w_down, gate_w):
    def _A_ref(x, wqkv, wo):
        B, S, D = x.shape
        H = 32
        Dh = D // H
        qkv = (lambda x, *d: x.permute(*d))((x @ wqkv).reshape(B, S, 3, H, Dh), 2, 0, 3, 1, 4)
        q, k, v = qkv[0], qkv[1], qkv[2]
        scores = torch.einsum("bhqd,bhkd->bhqk", q, k) * (Dh ** -0.5)
        p = _softmax(scores, axis=-1)
        o = torch.einsum("bhqk,bhkd->bhqd", p, v)
        return (lambda x, *d: x.permute(*d))(o, 0, 2, 1, 3).reshape(B, S, D) @ wo

    def _B_ref(x, w_gate, w_up, w_down):
        g = torch.einsum("bsd,df->bsf", x, w_gate)
        u = torch.einsum("bsd,df->bsf", x, w_up)
        h = g * u
        return torch.einsum("bsf,fd->bsd", h, w_down)

    x = A_x
    g = _sigmoid((x * gate_w).sum(-1, keepdims=True))
    a = _A_ref(x, A_wqkv, A_wo)
    b = _B_ref(x, B_w_gate, B_w_up, B_w_down)
    return g * a + (1 - g) * b
```

```python
import math
import sys

KNAME = "gated_mix__mha_block__glu_gated_bilinear__prompt"

Q16_OFF = 0x000000
K16_OFF = 0x200000
Q2_OFF = 0x400000
K2_OFF = 0x440000
VT_OFF = 0x480000
O_OFF = 0x700000
H_OFF = 0x1000000
P_OFF = 0x3000000
WS_SIZE = 0x10000000
P_STRIDE = 2048 * 576 * 4

ARG_X, ARG_WQKV, ARG_WO, ARG_BX, ARG_WG, ARG_WU, ARG_WD, ARG_GW, ARG_OUT, ARG_DBG, ARG_WS = [8 * i for i in range(11)]


class Asm:
    def __init__(self):
        self.lines = []

    def __call__(self, s):
        self.lines.append("    " + s)

    def label(self, s):
        self.lines.append(s + ":")

    def raw(self, s):
        self.lines.append(s)

    def text(self):
        return "\n".join(self.lines) + "\n"


def vr(b, n):
    return f"v[{b}:{b + n - 1}]"


def sr(b, n):
    return f"s[{b}:{b + n - 1}]"


def kernel_begin(a, name):
    a.raw(".text")
    a.raw(f".globl {name}")
    a.raw(".p2align 8")
    a.raw(f".type {name},@function")
    a.label(name)


def kernel_desc(a, name, nvgpr, nsgpr=96):
    a.raw('.section .rodata,"a"')
    a.raw(".p2align 6")
    a.raw(f".amdhsa_kernel {name}")
    a.raw(f"  .amdhsa_next_free_vgpr {nvgpr}")
    a.raw(f"  .amdhsa_next_free_sgpr {nsgpr}")
    a.raw(f"  .amdhsa_accum_offset {((nvgpr + 3) // 4) * 4}")
    a.raw("  .amdhsa_group_segment_fixed_size 0")
    a.raw("  .amdhsa_kernarg_size 88")
    a.raw("  .amdhsa_user_sgpr_count 2")
    a.raw("  .amdhsa_user_sgpr_kernarg_segment_ptr 1")
    a.raw("  .amdhsa_system_sgpr_workgroup_id_x 1")
    a.raw(".end_amdhsa_kernel")


def make_srd(a, d, base_pair, off_sgpr_or_imm, nrec):
    lo, hi = base_pair, base_pair + 1
    if off_sgpr_or_imm is None:
        a(f"s_mov_b32 s{d}, s{lo}")
        a(f"s_and_b32 s{d + 1}, s{hi}, 0xffff")
    else:
        a(f"s_add_u32 s{d}, s{lo}, {off_sgpr_or_imm}")
        a(f"s_addc_u32 s{d + 1}, s{hi}, 0")
        a(f"s_and_b32 s{d + 1}, s{d + 1}, 0xffff")
    a(f"s_mov_b32 s{d + 2}, {nrec}")
    a(f"s_mov_b32 s{d + 3}, 0x20000")


STAGE = 20480
NST = 18


def gen_gemm(a, name, kind):
    L = name[-12:-7]
    if kind == "qkv":
        n_wg = 16 * 9
    elif kind == "glu":
        n_wg = 16 * 48
    else:
        n_wg = 16 * 3 * 9
    kernel_begin(a, name)
    a(f"s_cmp_ge_u32 s2, {n_wg}")
    a(f"s_cbranch_scc1 L_{name}_end")
    a(f"s_load_dwordx2 s[24:25], s[0:1], {ARG_WS}")
    a(f"s_load_dwordx2 s[26:27], s[0:1], {ARG_X}")
    if kind == "qkv":
        a(f"s_load_dwordx2 s[28:29], s[0:1], {ARG_WQKV}")
    elif kind == "glu":
        a(f"s_load_dwordx2 s[28:29], s[0:1], {ARG_WG}")
        a(f"s_load_dwordx2 s[30:31], s[0:1], {ARG_WU}")
    else:
        a(f"s_load_dwordx2 s[28:29], s[0:1], {ARG_WD}")
        a(f"s_load_dwordx2 s[30:31], s[0:1], {ARG_WO}")
    a("s_and_b32 s32, s2, 15")
    a("s_lshr_b32 s33, s2, 4")
    if kind == "fin":
        a("s_mul_i32 s34, s33, 0x5556")
        a("s_lshr_b32 s34, s34, 16")
        a("s_mul_i32 s35, s34, 3")
        a("s_sub_u32 s33, s33, s35")
    a("v_lshrrev_b32 v1, 6, v0")
    a("v_and_b32 v0, 63, v0")
    a("s_nop 0")
    a("v_readfirstlane_b32 s36, v1")
    a("s_lshl_b32 s37, s32, 7")
    a("s_waitcnt lgkmcnt(0)")
    if kind == "qkv":
        make_srd(a, 4, 26, None, 2048 * 1152)
        make_srd(a, 8, 28, None, 576 * 3456)
        make_srd(a, 12, 28, None, 576 * 3456)
        a("s_mov_b32 s38, 1152")
        a("s_mov_b32 s39, 3456")
        a("s_mul_i32 s40, s33, 192")
        a("s_add_u32 s41, s40, 96")
    elif kind == "glu":
        make_srd(a, 4, 26, None, 2048 * 1152)
        make_srd(a, 8, 28, None, 576 * 9216)
        make_srd(a, 12, 30, None, 576 * 9216)
        a("s_mov_b32 s38, 1152")
        a("s_mov_b32 s39, 9216")
        a("s_mul_i32 s40, s33, 96")
        a("s_mov_b32 s41, s40")
    else:
        a("s_mul_i32 s42, s34, 1152")
        a(f"s_add_u32 s42, s42, {H_OFF}")
        a(f"s_mul_i32 s60, s34, {576 * 1152}")
        a(f"s_sub_u32 s61, {4608 * 1152}, s60")
        a("s_movk_i32 s38, 9216")
        a("s_cmp_lt_u32 s34, 8")
        a(f"s_cselect_b32 s42, s42, {O_OFF}")
        a("s_cselect_b32 s38, s38, 1152")
        a("s_cselect_b32 s60, s60, 0")
        a("s_cselect_b32 s44, s28, s30")
        a("s_cselect_b32 s45, s29, s31")
        a(f"s_cselect_b32 s61, s61, {576 * 1152}")
        a(f"s_sub_u32 s43, {WS_SIZE}, s42")
        make_srd(a, 4, 24, "s42", "s43")
        make_srd(a, 8, 44, "s60", "s61")
        make_srd(a, 12, 44, "s60", "s61")
        a("s_mov_b32 s39, 1152")
        a("s_mul_i32 s40, s33, 192")
        a("s_add_u32 s41, s40, 96")
    make_srd(a, 16, 24, None, WS_SIZE)
    a("s_cmp_lt_u32 s36, 2")
    a("s_cselect_b32 s20, s8, s12")
    a("s_cselect_b32 s21, s9, s13")
    a("s_cselect_b32 s22, s10, s14")
    a("s_cselect_b32 s23, s11, s15")
    a("s_cselect_b32 s46, s40, s41")
    a("v_lshrrev_b32 v1, 2, v0")
    a("s_lshl_b32 s47, s36, 5")
    a("s_add_u32 s47, s47, s37")
    a("v_add_u32 v1, s47, v1")
    a("v_mul_lo_u32 v5, v1, s38")
    a("v_and_b32 v2, 3, v0")
    a("v_lshrrev_b32 v3, 5, v0")
    a("v_lshlrev_b32 v3, 1, v3")
    a("v_xor_b32 v2, v2, v3")
    a("v_lshl_add_u32 v5, v2, 4, v5")
    a("s_lshl_b32 s47, s38, 4")
    a("v_add_u32 v6, s47, v5")
    a("s_and_b32 s47, s36, 1")
    a("s_mul_i32 s47, s47, 192")
    for e in range(3):
        a(f"v_add_u32 v1, s47, v0")
        if e:
            a(f"v_add_u32 v1, {64 * e}, v1")
        a("v_mul_u32_u24 v2, 0xaab, v1")
        a("v_lshrrev_b32 v2, 15, v2")
        a("v_mul_u32_u24 v3, 12, v2")
        a("v_sub_u32 v3, v1, v3")
        a("v_bfe_u32 v4, v2, 3, 1")
        a("v_lshlrev_b32 v4, 1, v4")
        a("v_xor_b32 v3, v3, v4")
        a("v_mul_lo_u32 v2, v2, s39")
        a("v_lshl_add_u32 v2, v3, 4, v2")
        a(f"s_lshl_b32 s48, s46, 1")
        a(f"v_add_u32 v{32 + e}, s48, v2")
    a("s_and_b32 s49, s36, 1")
    a("s_lshr_b32 s50, s36, 1")
    a("v_and_b32 v1, 15, v0")
    a("s_lshl_b32 s47, s49, 6")
    a("v_add_u32 v1, s47, v1")
    a("v_lshlrev_b32 v1, 6, v1")
    a("v_lshrrev_b32 v2, 4, v0")
    a("v_bfe_u32 v3, v0, 3, 1")
    a("v_lshlrev_b32 v3, 1, v3")
    a("v_xor_b32 v2, v2, v3")
    a("v_lshl_add_u32 v7, v2, 4, v1")
    a("v_lshrrev_b32 v1, 4, v0")
    a("v_bfe_u32 v2, v0, 2, 2")
    a("v_lshl_add_u32 v2, v1, 3, v2")
    a("v_mul_u32_u24 v2, 192, v2")
    a("v_and_b32 v3, 1, v0")
    a("v_lshl_add_u32 v2, v3, 3, v2")
    a("v_add_u32 v2, 8192, v2")
    a("v_and_b32 v1, 1, v1")
    a("v_lshlrev_b32 v1, 1, v1")
    a("v_bfe_u32 v3, v0, 1, 1")
    a("s_mul_i32 s47, s50, 6")
    a("v_add_u32 v3, s47, v3")
    for j in range(3):
        a(f"v_add_u32 v4, {2 * j}, v3")
        a("v_xor_b32 v4, v4, v1")
        a(f"v_lshl_add_u32 v{35 + j}, v4, 4, v2")
    a("s_lshl_b32 s51, s36, 11")
    a("s_mul_i32 s52, s36, 3072")
    a("s_add_u32 s52, s52, 8192")
    ACC = 72
    XF = 40
    WF = 8

    def issue_dma(st):
        buf = (st & 1) * STAGE
        a(f"s_mov_b32 s53, {st * 64}")
        a(f"s_mul_i32 s54, s39, {st * 32}")
        for e in range(2):
            a(f"s_add_u32 m0, s51, {buf + e * 1024}")
            a("s_nop 0")
            a(f"buffer_load_dwordx4 v{5 + e}, s[4:7], s53 offen lds")
        for e in range(3):
            a(f"s_add_u32 m0, s52, {buf + e * 1024}")
            a("s_nop 0")
            a(f"buffer_load_dwordx4 v{32 + e}, s[20:23], s54 offen lds")

    issue_dma(0)
    for i in range(96):
        a(f"v_mov_b32 v{ACC + i}, 0")
    swapped_branch = kind == "qkv"

    def mainloop(swapped):
        for st in range(NST):
            buf = (st & 1) * STAGE
            a("s_waitcnt vmcnt(0)")
            a("s_barrier")
            if st + 1 < NST:
                issue_dma(st + 1)
            for i in range(4):
                a(f"ds_read_b128 {vr(XF + 4 * i, 4)}, v7 offset:{buf + i * 1024}")
            for j in range(6):
                off = buf + (j // 3) * 6144
                a(f"ds_read_b64_tr_b16 {vr(WF + 4 * j, 2)}, v{35 + j % 3} offset:{off}")
                a(f"ds_read_b64_tr_b16 {vr(WF + 4 * j + 2, 2)}, v{35 + j % 3} offset:{off + 768}")
            for j in range(6):
                a(f"s_waitcnt lgkmcnt({10 - 2 * j})")
                for i in range(4):
                    d = vr(ACC + (j * 4 + i) * 4, 4)
                    if swapped:
                        a(f"v_mfma_f32_16x16x32_bf16 {d}, {vr(WF + 4 * j, 4)}, {vr(XF + 4 * i, 4)}, {d}")
                    else:
                        a(f"v_mfma_f32_16x16x32_bf16 {d}, {vr(XF + 4 * i, 4)}, {vr(WF + 4 * j, 4)}, {d}")
        a("s_nop 7")
        a("s_nop 1")

    def acc(j, i, r):
        return ACC + (j * 4 + i) * 4 + r

    if kind == "qkv":
        a("s_cmp_ge_u32 s33, 6")
        a(f"s_cbranch_scc1 L_{name}_vpath")
        mainloop(True)
        a("v_and_b32 v1, 15, v0")
        a("s_lshl_b32 s47, s49, 6")
        a("s_add_u32 s47, s47, s37")
        a("v_add_u32 v40, s47, v1")
        for i in range(1, 4):
            a(f"v_add_u32 v{40 + i}, {16 * i}, v40")
        a("s_cmp_ge_u32 s33, 3")
        a("s_cselect_b32 s55, 1, 0")
        a("s_mul_i32 s56, s55, 3")
        a("s_sub_u32 s56, s33, s56")
        a("s_mul_i32 s56, s56, 192")
        a("s_mul_i32 s57, s50, 48")
        a("s_add_u32 s56, s56, s57")
        a(f"s_mul_i32 s58, s55, 0x200000")
        a(f"s_mul_i32 s59, s55, 0x40000")
        a(f"s_add_u32 s59, s59, {Q2_OFF}")
        a("v_lshrrev_b32 v1, 4, v0")
        a("v_lshlrev_b32 v1, 2, v1")
        a("v_add_u32 v1, s56, v1")
        for j in range(6):
            for pr in range(2):
                cadd = (j // 3) * 96 + (j % 3) * 16 + 2 * pr
                a(f"v_add_u32 v2, {cadd}, v1")
                a("v_mul_u32_u24 v3, 0xe39, v2")
                a("v_lshrrev_b32 v3, 16, v3")
                a("v_mul_u32_u24 v4, 18, v3")
                a("v_sub_u32 v4, v2, v4")
                a("v_lshrrev_b32 v8, 3, v4")
                a("v_lshlrev_b32 v8, 15, v8")
                a("v_lshl_add_u32 v8, v3, 16, v8")
                a("v_and_b32 v9, 7, v4")
                a("v_lshl_add_u32 v8, v9, 1, v8")
                a("v_add_u32 v8, s58, v8")
                a("v_lshlrev_b32 v9, 13, v3")
                a("v_add_u32 v9, s59, v9")
                a("v_cmp_eq_u32 vcc, 16, v4")
                a("v_mov_b32 v10, 16")
                a("v_mov_b32 v11, 4")
                a("v_cndmask_b32 v8, v8, v9, vcc")
                a("v_cndmask_b32 v10, v10, v11, vcc")
                for i in range(4):
                    a(f"v_mad_u32_u24 v{12 + i}, v{40 + i}, v10, v8")
                    a(f"v_cvt_pk_bf16_f32 v{16 + i}, v{acc(j, i, 2 * pr)}, v{acc(j, i, 2 * pr + 1)}")
                for i in range(4):
                    a(f"buffer_store_dword v{16 + i}, v{12 + i}, s[16:19], 0 offen")
                a("s_nop 0")
        a("s_endpgm")
        a.label(f"L_{name}_vpath")
        mainloop(False)
        a("v_bfe_u32 v1, v0, 4, 1")
        a("v_lshlrev_b32 v1, 3, v1")
        a("v_bfe_u32 v2, v0, 5, 1")
        a("v_lshl_add_u32 v1, v2, 2, v1")
        a("s_lshl_b32 s47, s49, 6")
        a("s_add_u32 s47, s47, s37")
        a("v_add_u32 v1, s47, v1")
        a("v_lshlrev_b32 v40, 1, v1")
        a("s_sub_u32 s56, s33, 6")
        a("s_mul_i32 s56, s56, 192")
        a("s_mul_i32 s57, s50, 48")
        a("s_add_u32 s56, s56, s57")
        a("v_and_b32 v1, 15, v0")
        a("v_add_u32 v1, s56, v1")
        a("s_mov_b32 s57, 73728")
        for j in range(6):
            cadd = (j // 3) * 96 + (j % 3) * 16
            a(f"v_add_u32 v2, {cadd}, v1")
            a("v_mul_u32_u24 v3, 0xe39, v2")
            a("v_lshrrev_b32 v3, 16, v3")
            a("v_mul_u32_u24 v4, 18, v3")
            a("v_sub_u32 v4, v2, v4")
            a("v_mul_lo_u32 v8, v3, s57")
            a("v_lshl_add_u32 v8, v4, 12, v8")
            a(f"v_add_u32 v8, {VT_OFF}, v8")
            a("v_add_u32 v8, v8, v40")
            for i in range(4):
                a(f"v_cvt_pk_bf16_f32 v{16 + 2 * i}, v{acc(j, i, 0)}, v{acc(j, i, 1)}")
                a(f"v_cvt_pk_bf16_f32 v{17 + 2 * i}, v{acc(j, i, 2)}, v{acc(j, i, 3)}")
            for i in range(4):
                a(f"buffer_store_dwordx2 {vr(16 + 2 * i, 2)}, v8, s[16:19], 0 offen offset:{32 * i}")
            a("s_nop 0")
        a("s_endpgm")
    elif kind == "glu":
        mainloop(True)
        a("v_and_b32 v1, 15, v0")
        a("s_lshl_b32 s47, s49, 6")
        a("s_add_u32 s47, s47, s37")
        a("v_add_u32 v1, s47, v1")
        a("s_mov_b32 s48, 9216")
        a("v_mul_lo_u32 v1, v1, s48")
        a("v_lshrrev_b32 v2, 4, v0")
        a("v_lshl_add_u32 v1, v2, 3, v1")
        a("s_mul_i32 s56, s50, 48")
        a("s_add_u32 s56, s56, s40")
        a("s_lshl_b32 s56, s56, 1")
        a(f"s_add_u32 s56, s56, {H_OFF}")
        a("v_add_u32 v1, s56, v1")
        a("s_mov_b32 s57, 0xffff0000")
        for i in range(4):
            a(f"s_mov_b32 s58, {i * 16 * 9216}")
            for jj in range(3):
                t = 8 + (jj & 1) * 16
                a(f"v_cvt_pk_bf16_f32 v{t}, v{acc(jj, i, 0)}, v{acc(jj, i, 1)}")
                a(f"v_cvt_pk_bf16_f32 v{t + 1}, v{acc(jj, i, 2)}, v{acc(jj, i, 3)}")
                a(f"v_cvt_pk_bf16_f32 v{t + 2}, v{acc(jj + 3, i, 0)}, v{acc(jj + 3, i, 1)}")
                a(f"v_cvt_pk_bf16_f32 v{t + 3}, v{acc(jj + 3, i, 2)}, v{acc(jj + 3, i, 3)}")
                a(f"v_lshlrev_b32 v{t + 4}, 16, v{t}")
                a(f"v_and_b32 v{t + 5}, s57, v{t}")
                a(f"v_lshlrev_b32 v{t + 6}, 16, v{t + 1}")
                a(f"v_and_b32 v{t + 7}, s57, v{t + 1}")
                a(f"v_lshlrev_b32 v{t + 8}, 16, v{t + 2}")
                a(f"v_and_b32 v{t + 9}, s57, v{t + 2}")
                a(f"v_lshlrev_b32 v{t + 10}, 16, v{t + 3}")
                a(f"v_and_b32 v{t + 11}, s57, v{t + 3}")
                for r in range(4):
                    a(f"v_mul_f32 v{t + 4 + r}, v{t + 4 + r}, v{t + 8 + r}")
                a(f"v_cvt_pk_bf16_f32 v{t + 12}, v{t + 4}, v{t + 5}")
                a(f"v_cvt_pk_bf16_f32 v{t + 13}, v{t + 6}, v{t + 7}")
                a(f"buffer_store_dwordx2 {vr(t + 12, 2)}, v1, s[16:19], s58 offen offset:{jj * 32}")
        a("s_endpgm")
    else:
        mainloop(True)
        a("v_and_b32 v1, 15, v0")
        a("s_lshl_b32 s47, s49, 6")
        a("s_add_u32 s47, s47, s37")
        a("v_add_u32 v1, s47, v1")
        a("v_mul_u32_u24 v1, 2304, v1")
        a("v_lshrrev_b32 v2, 4, v0")
        a("v_lshl_add_u32 v1, v2, 4, v1")
        a("s_mul_i32 s56, s50, 48")
        a("s_add_u32 s56, s56, s40")
        a("s_lshl_b32 s56, s56, 2")
        a(f"s_mul_i32 s57, s34, {P_STRIDE}")
        a("s_add_u32 s56, s56, s57")
        a(f"s_add_u32 s56, s56, {P_OFF}")
        a("v_add_u32 v1, s56, v1")
        for i in range(4):
            a(f"s_mov_b32 s58, {i * 16 * 2304}")
            for j in range(6):
                off = ((j // 3) * 96 + (j % 3) * 16) * 4
                a(f"buffer_store_dwordx4 {vr(acc(j, i, 0), 4)}, v1, s[16:19], s58 offen offset:{off}")
        a("s_endpgm")
    a.label(f"L_{name}_end")
    a("s_endpgm")
    kernel_desc(a, name, 168)


A_VT = 65536
A_VSTR = 4112
A_K2 = A_VT + 19 * A_VSTR
A_LDS = A_K2 + 8192


def gen_attn(a, name):
    kernel_begin(a, name)
    a("s_cmp_ge_u32 s2, 256")
    a(f"s_cbranch_scc1 L_{name}_end")
    a(f"s_load_dwordx2 s[24:25], s[0:1], {ARG_WS}")
    a("s_lshr_b32 s32, s2, 3")
    a("s_and_b32 s33, s2, 7")
    a("v_lshrrev_b32 v1, 6, v0")
    a("v_and_b32 v0, 63, v0")
    a("s_nop 0")
    a("v_readfirstlane_b32 s36, v1")
    a("s_waitcnt lgkmcnt(0)")
    make_srd(a, 4, 24, None, WS_SIZE)
    a("v_lshlrev_b32 v1, 4, v0")
    a("s_lshl_b32 s40, s32, 16")
    a(f"s_add_u32 s40, s40, {K16_OFF}")
    a("s_lshl_b32 s41, s36, 10")
    a("s_add_u32 s40, s40, s41")
    for t in range(8):
        a(f"s_add_u32 m0, s41, {t * 8192}")
        a(f"s_add_u32 s42, s40, {t * 8192}")
        a("buffer_load_dwordx4 v1, s[4:7], s42 offen lds")
    a("s_mul_i32 s40, s32, 73728")
    a(f"s_add_u32 s40, s40, {VT_OFF}")
    a("s_add_u32 s40, s40, s41")
    a("s_lshr_b32 s43, s36, 2")
    a(f"s_mul_i32 s43, s43, {A_VSTR}")
    a("s_and_b32 s44, s36, 3")
    a("s_lshl_b32 s44, s44, 10")
    a("s_add_u32 s43, s43, s44")
    for t in range(9):
        a(f"s_add_u32 m0, s43, {A_VT + 2 * t * A_VSTR}")
        a(f"s_add_u32 s42, s40, {t * 8192}")
        a("buffer_load_dwordx4 v1, s[4:7], s42 offen lds")
    a("s_lshl_b32 s40, s32, 13")
    a(f"s_add_u32 s40, s40, {K2_OFF}")
    a("s_add_u32 s40, s40, s41")
    a(f"s_add_u32 m0, s41, {A_K2}")
    a("s_nop 0")
    a("buffer_load_dwordx4 v1, s[4:7], s40 offen lds")
    a("v_mov_b32 v2, 0x3f803f80")
    a("v_mov_b32 v3, 0x3f803f80")
    a("s_lshl_b32 s42, s36, 9")
    a("v_lshlrev_b32 v4, 3, v0")
    a("v_add_u32 v4, s42, v4")
    a(f"v_add_u32 v4, {A_VT + 18 * A_VSTR}, v4")
    a("ds_write_b64 v4, v[2:3]")
    QF1, QF2 = 8, 12
    a("v_and_b32 v2, 31, v0")
    a("s_lshl_b32 s42, s33, 8")
    a("s_lshl_b32 s43, s36, 5")
    a("s_add_u32 s42, s42, s43")
    a("v_add_u32 v2, s42, v2")
    a("v_lshrrev_b32 v3, 5, v0")
    a("v_lshlrev_b32 v4, 4, v2")
    a("v_lshl_add_u32 v4, v3, 15, v4")
    a("s_lshl_b32 s42, s32, 16")
    a(f"s_add_u32 s42, s42, {Q16_OFF}")
    a(f"buffer_load_dwordx4 {vr(QF1, 4)}, v4, s[4:7], s42 offen")
    a("v_lshlrev_b32 v4, 2, v2")
    a("s_lshl_b32 s42, s32, 13")
    a(f"s_add_u32 s42, s42, {Q2_OFF}")
    a(f"buffer_load_dword v{QF2}, v4, s[4:7], s42 offen")
    for r in range(1, 4):
        a(f"v_mov_b32 v{QF2 + r}, 0")
    a("v_and_b32 v4, 31, v0")
    a("v_lshlrev_b32 v5, 4, v4")
    a("v_lshl_add_u32 v5, v3, 15, v5")
    a("v_lshlrev_b32 v6, 2, v4")
    a(f"v_add_u32 v6, {A_K2}, v6")
    a("v_min_u32 v7, 18, v4")
    a(f"v_mul_u32_u24 v7, {A_VSTR}, v7")
    a("v_lshl_add_u32 v7, v3, 4, v7")
    a(f"v_add_u32 v7, {A_VT}, v7")
    KF = 16
    K2F = 24
    VF = 32
    SA, SB = 48, 80
    PF = 112
    OA = 128
    VM, VMC, VT1, VT2, VAL = 144, 145, 146, 147, 148
    for t in range(2):
        for r in range(1, 4):
            a(f"v_mov_b32 v{K2F + 4 * t + r}, 0")
    for r in range(16):
        a(f"v_mov_b32 v{OA + r}, 0")
    a(f"v_mov_b32 v{VM}, 0xff800000")
    cval = math.log2(math.e) / math.sqrt(18.0)
    import struct
    cbits = struct.unpack("<I", struct.pack("<f", cval))[0]
    a(f"s_mov_b32 s50, 0x{cbits:08x}")
    a("s_waitcnt vmcnt(0) lgkmcnt(0)")
    a("v_cmp_gt_u32 vcc, 32, v0")
    a("s_nop 1")
    a(f"v_cndmask_b32 v{QF2}, 0, v{QF2}, vcc")
    a("s_barrier")

    def read_K(off_keys):
        for t in range(2):
            a(f"ds_read_b128 {vr(KF + 4 * t, 4)}, v5 offset:{(off_keys + 32 * t) * 16}")
        for t in range(2):
            a(f"ds_read_b32 v{K2F + 4 * t}, v6 offset:{(off_keys + 32 * t) * 4}")

    def read_V(off_keys):
        for b in range(4):
            a(f"ds_read_b128 {vr(VF + 4 * b, 4)}, v7 offset:{(off_keys + 16 * b) * 2}")

    def qk(S):
        for t in range(2):
            d = vr(S + 16 * t, 16)
            a(f"v_mfma_f32_32x32x16_bf16 {d}, {vr(KF + 4 * t, 4)}, {vr(QF1, 4)}, 0")
            a(f"v_mfma_f32_32x32x16_bf16 {d}, {vr(K2F + 4 * t, 4)}, {vr(QF2, 4)}, {d}")

    def softmax_pv(S):
        a(f"v_max3_f32 v{VT1}, v{S}, v{S + 1}, v{VM}")
        for k in range(1, 16):
            a(f"v_max3_f32 v{VT1}, v{S + 2 * k}, v{S + 2 * k + 1}, v{VT1}")
        a(f"v_mov_b32 v{VT2}, v{VT1}")
        a("s_nop 1")
        a(f"v_permlane32_swap_b32 v{VT1}, v{VT2}")
        a("s_nop 1")
        a(f"v_max_f32 v{VT1}, v{VT1}, v{VT2}")
        a(f"v_mul_f32 v{VMC}, s50, v{VT1}")
        a(f"v_fma_f32 v{VAL}, v{VM}, s50, -v{VMC}")
        a(f"v_exp_f32 v{VAL}, v{VAL}")
        a(f"v_mov_b32 v{VM}, v{VT1}")
        for k in range(32):
            a(f"v_fma_f32 v{S + k}, v{S + k}, s50, -v{VMC}")
        for k in range(32):
            a(f"v_exp_f32 v{S + k}, v{S + k}")
        for r in range(12):
            a(f"v_mul_f32 v{OA + r}, v{OA + r}, v{VAL}")
        for k in range(16):
            a(f"v_cvt_pk_bf16_f32 v{PF + k}, v{S + 2 * k}, v{S + 2 * k + 1}")
        a("s_waitcnt lgkmcnt(4)")
        a("s_nop 0")
        d = vr(OA, 16)
        for b in range(4):
            a(f"v_mfma_f32_32x32x16_bf16 {d}, {vr(VF + 4 * b, 4)}, {vr(PF + 4 * b, 4)}, {d}")

    read_K(0)
    a("s_waitcnt lgkmcnt(0)")
    qk(SA)
    read_K(64)
    read_V(0)
    a("s_mov_b32 s51, 0")
    a.label(f"L_{name}_loop")
    a("s_waitcnt lgkmcnt(4)")
    qk(SB)
    read_K(128)
    softmax_pv(SA)
    read_V(64)
    a("s_waitcnt lgkmcnt(4)")
    qk(SA)
    read_K(192)
    softmax_pv(SB)
    read_V(128)
    a("v_add_u32 v5, 2048, v5")
    a("v_add_u32 v6, 512, v6")
    a("v_add_u32 v7, 256, v7")
    a("s_add_u32 s51, s51, 1")
    a("s_cmp_lt_u32 s51, 16")
    a(f"s_cbranch_scc1 L_{name}_loop")
    a("s_waitcnt lgkmcnt(0)")
    a("s_nop 7")
    a("s_nop 7")
    a(f"v_mov_b32 v{VT1}, v{OA + 10}")
    a(f"v_mov_b32 v{VT2}, v{OA + 10}")
    a("s_nop 1")
    a(f"v_permlane32_swap_b32 v{VT1}, v{VT2}")
    a("s_nop 1")
    a(f"v_rcp_f32 v{VT1}, v{VT1}")
    a("s_nop 0")
    for r in range(12):
        a(f"v_mul_f32 v{OA + r}, v{OA + r}, v{VT1}")
    for k in range(6):
        a(f"v_cvt_pk_bf16_f32 v{PF + k}, v{OA + 2 * k}, v{OA + 2 * k + 1}")
    a("v_mul_u32_u24 v4, 1152, v2")
    a("v_lshl_add_u32 v4, v3, 3, v4")
    a("s_mul_i32 s42, s32, 36")
    a(f"s_add_u32 s42, s42, {O_OFF}")
    a(f"buffer_store_dword v{PF}, v4, s[4:7], s42 offen")
    a(f"buffer_store_dword v{PF + 1}, v4, s[4:7], s42 offen offset:4")
    a(f"buffer_store_dword v{PF + 2}, v4, s[4:7], s42 offen offset:16")
    a(f"buffer_store_dword v{PF + 3}, v4, s[4:7], s42 offen offset:20")
    a("v_cmp_gt_u32 vcc, 32, v0")
    a("s_and_saveexec_b64 s[44:45], vcc")
    a(f"buffer_store_dword v{PF + 4}, v4, s[4:7], s42 offen offset:32")
    a.label(f"L_{name}_end")
    a("s_endpgm")
    kernel_desc(a, name, 152)


def gen_reduce(a, name):
    kernel_begin(a, name)
    a("s_cmp_ge_u32 s2, 512")
    a(f"s_cbranch_scc1 L_{name}_end")
    a(f"s_load_dwordx2 s[24:25], s[0:1], {ARG_WS}")
    a(f"s_load_dwordx2 s[26:27], s[0:1], {ARG_X}")
    a(f"s_load_dwordx2 s[28:29], s[0:1], {ARG_GW}")
    a(f"s_load_dwordx2 s[30:31], s[0:1], {ARG_OUT}")
    a("v_lshrrev_b32 v1, 6, v0")
    a("v_and_b32 v0, 63, v0")
    a("s_nop 0")
    a("v_readfirstlane_b32 s36, v1")
    a("s_lshl_b32 s37, s2, 2")
    a("s_add_u32 s37, s37, s36")
    a("s_waitcnt lgkmcnt(0)")
    make_srd(a, 4, 24, None, WS_SIZE)
    make_srd(a, 8, 26, None, 2048 * 1152)
    make_srd(a, 12, 28, None, 1152)
    make_srd(a, 16, 30, None, 2048 * 1152)
    a("v_lshlrev_b32 v1, 3, v0")
    a("v_lshlrev_b32 v2, 4, v0")
    a("s_mul_i32 s38, s37, 1152")
    a("s_mul_i32 s39, s37, 2304")
    a("s_mov_b32 s57, 0xffff0000")
    a("v_cmp_gt_u32 s[40:41], 16, v0")
    for c in range(3):
        if c == 2:
            a("s_mov_b64 s[42:43], exec")
            a("s_mov_b64 exec, s[40:41]")
        a(f"buffer_load_dwordx2 {vr(4 + 2 * c, 2)}, v1, s[8:11], s38 offen offset:{512 * c}")
        a(f"buffer_load_dwordx2 {vr(10 + 2 * c, 2)}, v1, s[12:15], 0 offen offset:{512 * c}")
        if c == 2:
            a("s_mov_b64 exec, s[42:43]")
    for c in range(3):
        if c == 2:
            a("s_mov_b64 exec, s[40:41]")
        for s in range(9):
            a(f"s_add_u32 s44, s39, {P_OFF + s * P_STRIDE}")
            a(f"buffer_load_dwordx4 {vr(32 + (c * 9 + s) * 4, 4)}, v2, s[4:7], s44 offen offset:{1024 * c}")
        if c == 2:
            a("s_mov_b64 exec, s[42:43]")
    a("v_mov_b32 v16, 0")
    a("s_waitcnt vmcnt(27)")
    for c in range(3):
        if c == 2:
            a("s_mov_b64 exec, s[40:41]")
        for h in range(2):
            xr, gr = 4 + 2 * c + h, 10 + 2 * c + h
            a(f"v_lshlrev_b32 v17, 16, v{xr}")
            a(f"v_and_b32 v18, s57, v{xr}")
            a(f"v_lshlrev_b32 v19, 16, v{gr}")
            a(f"v_and_b32 v20, s57, v{gr}")
            a("v_mul_f32 v17, v17, v19")
            a("v_mul_f32 v18, v18, v20")
            a("v_cvt_pk_bf16_f32 v17, v17, v18")
            a("v_lshlrev_b32 v18, 16, v17")
            a("v_and_b32 v17, s57, v17")
            a("v_add_f32 v16, v16, v18")
            a("v_add_f32 v16, v16, v17")
        if c == 2:
            a("s_mov_b64 exec, s[42:43]")
    for m in (1, 2, 4, 8, 16):
        a(f"ds_swizzle_b32 v17, v16 offset:0x{(m << 10) | 0x1f:04x}")
        a("s_waitcnt lgkmcnt(0)")
        a("v_add_f32 v16, v16, v17")
    a("v_mov_b32 v17, v16")
    a("s_nop 1")
    a("v_permlane32_swap_b32 v16, v17")
    a("s_nop 1")
    a("v_add_f32 v16, v16, v17")
    a("v_cvt_pk_bf16_f32 v16, v16, v16")
    a("v_and_b32 v16, s57, v16")
    a("v_mul_f32 v16, 0xbfb8aa3b, v16")
    a("v_exp_f32 v16, v16")
    a("s_nop 0")
    a("v_add_f32 v16, 1.0, v16")
    a("v_rcp_f32 v16, v16")
    a("s_nop 0")
    a("v_cvt_pk_bf16_f32 v16, v16, v16")
    a("v_and_b32 v16, s57, v16")
    a("v_sub_f32 v17, 1.0, v16")
    a("v_cvt_pk_bf16_f32 v17, v17, v17")
    a("v_and_b32 v17, s57, v17")
    a("s_waitcnt vmcnt(0)")
    for c in range(3):
        for r in range(4):
            b0 = 32 + (c * 9) * 4 + r
            a(f"v_add_f32 v{b0}, v{b0}, v{b0 + 4}")
            a(f"v_add_f32 v{b0 + 8}, v{b0 + 8}, v{b0 + 12}")
            a(f"v_add_f32 v{b0 + 16}, v{b0 + 16}, v{b0 + 20}")
            a(f"v_add_f32 v{b0 + 24}, v{b0 + 24}, v{b0 + 28}")
            a(f"v_add_f32 v{b0}, v{b0}, v{b0 + 8}")
            a(f"v_add_f32 v{b0 + 16}, v{b0 + 16}, v{b0 + 24}")
            a(f"v_add_f32 v{b0}, v{b0}, v{b0 + 16}")
            a(f"v_cvt_pk_bf16_f32 v18, v{b0}, v{b0 + 32}")
            a("v_lshlrev_b32 v19, 16, v18")
            a("v_and_b32 v18, s57, v18")
            a("v_mul_f32 v18, v18, v16")
            a("v_mul_f32 v19, v19, v17")
            a("v_cvt_pk_bf16_f32 v18, v18, v19")
            a("v_lshlrev_b32 v19, 16, v18")
            a("v_and_b32 v18, s57, v18")
            a(f"v_add_f32 v{b0}, v18, v19")
        b0 = 32 + (c * 9) * 4
        a(f"v_cvt_pk_bf16_f32 v{20 + 2 * c}, v{b0}, v{b0 + 1}")
        a(f"v_cvt_pk_bf16_f32 v{21 + 2 * c}, v{b0 + 2}, v{b0 + 3}")
    for c in range(3):
        if c == 2:
            a("s_mov_b64 exec, s[40:41]")
        a(f"buffer_store_dwordx2 {vr(20 + 2 * c, 2)}, v1, s[16:19], s38 offen offset:{512 * c}")
    a.label(f"L_{name}_end")
    a("s_endpgm")
    kernel_desc(a, name, 144)


def main():
    hdr = open("cdna_kernels/" + KNAME + ".s.ref").read().split("\n")
    out = []
    for ln in hdr:
        if ln.startswith("; @launch"):
            break
        out.append(ln)
    k_qkv = "gm_qkv_kernel"
    k_glu = "gm_glu_kernel"
    k_att = "gm_att_kernel"
    k_fin = "gm_fin_kernel"
    k_red = KNAME + "_kernel"
    out.append(f"; @launch kernel={k_qkv} grid=(144,1,1) block=(256,1,1) lds=40960")
    out.append(f"; @launch kernel={k_glu} grid=(768,1,1) block=(256,1,1) lds=40960")
    out.append(f"; @launch kernel={k_att} grid=(256,1,1) block=(512,1,1) lds={A_LDS + 4096}")
    out.append(f"; @launch kernel={k_fin} grid=(432,1,1) block=(256,1,1) lds=40960")
    out.append(f"; @launch kernel={k_red} grid=(512,1,1) block=(256,1,1) lds=0")
    out.append('.amdgcn_target "amdgcn-amd-amdhsa--gfx950"')
    a = Asm()
    gen_gemm(a, k_qkv, "qkv")
    gen_gemm(a, k_glu, "glu")
    gen_attn(a, k_att)
    gen_gemm(a, k_fin, "fin")
    gen_reduce(a, k_red)
    txt = "\n".join(out) + "\n" + a.text()
    dst = sys.argv[1] if len(sys.argv) > 1 else "cdna_kernels/" + KNAME + ".s"
    open(dst, "w").write(txt)
    print("wrote", dst, len(txt))


if __name__ == "__main__":
    main()
```

```python
import math
import sys
import os
ABL = os.environ.get('ABL', '')

KNAME = "gated_mix__mha_block__glu_gated_bilinear__prompt"

Q16_OFF = 0x000000
K16_OFF = 0x200000
Q2_OFF = 0x400000
K2_OFF = 0x440000
VT_OFF = 0x480000
O_OFF = 0x700000
H_OFF = 0x1000000
P_OFF = 0x3000000
WS_SIZE = 0x10000000
P_STRIDE = 2048 * 576 * 4

ARG_X, ARG_WQKV, ARG_WO, ARG_BX, ARG_WG, ARG_WU, ARG_WD, ARG_GW, ARG_OUT, ARG_DBG, ARG_WS = [8 * i for i in range(11)]


class Asm:
    def __init__(self):
        self.lines = []

    def __call__(self, s):
        self.lines.append("    " + s)

    def label(self, s):
        self.lines.append(s + ":")

    def raw(self, s):
        self.lines.append(s)

    def text(self):
        return "\n".join(self.lines) + "\n"


def vr(b, n):
    return f"v[{b}:{b + n - 1}]"


def sr(b, n):
    return f"s[{b}:{b + n - 1}]"


def kernel_begin(a, name):
    a.raw(".text")
    a.raw(f".globl {name}")
    a.raw(".p2align 8")
    a.raw(f".type {name},@function")
    a.label(name)


def kernel_desc(a, name, nvgpr, nsgpr=96):
    a.raw('.section .rodata,"a"')
    a.raw(".p2align 6")
    a.raw(f".amdhsa_kernel {name}")
    a.raw(f"  .amdhsa_next_free_vgpr {nvgpr}")
    a.raw(f"  .amdhsa_next_free_sgpr {nsgpr}")
    a.raw(f"  .amdhsa_accum_offset {((nvgpr + 3) // 4) * 4}")
    a.raw("  .amdhsa_group_segment_fixed_size 0")
    a.raw("  .amdhsa_kernarg_size 88")
    a.raw("  .amdhsa_user_sgpr_count 2")
    a.raw("  .amdhsa_user_sgpr_kernarg_segment_ptr 1")
    a.raw("  .amdhsa_system_sgpr_workgroup_id_x 1")
    a.raw(".end_amdhsa_kernel")


def make_srd(a, d, base_pair, off_sgpr_or_imm, nrec):
    lo, hi = base_pair, base_pair + 1
    if off_sgpr_or_imm is None:
        a(f"s_mov_b32 s{d}, s{lo}")
        a(f"s_and_b32 s{d + 1}, s{hi}, 0xffff")
    else:
        a(f"s_add_u32 s{d}, s{lo}, {off_sgpr_or_imm}")
        a(f"s_addc_u32 s{d + 1}, s{hi}, 0")
        a(f"s_and_b32 s{d + 1}, s{d + 1}, 0xffff")
    a(f"s_mov_b32 s{d + 2}, {nrec}")
    a(f"s_mov_b32 s{d + 3}, 0x20000")


NS = 3
QSCALE = math.log2(math.e) / math.sqrt(18.0)
import struct
def fbits(x):
    return struct.unpack("<I", struct.pack("<f", x))[0]

GEMM_CFG = {
    "qkv": (2, 2, 16, 9, 1, 2, 4),
    "glu": (3, 2, 8, 32, 1, 4, 4),
    "fin": (2, 1, 16, 6, 5, 2, 4),
}


def gemm_lds(kind):
    NWN, NH, _, _, _, NWM, NS = GEMM_CFG[kind]
    return NS * (NWM * 4096 + NH * 32 * 96 * NWN)


def gemm_launch(kind):
    NWN, NH, NMT, NNT, NSP, NWM, NS = GEMM_CFG[kind]
    return f"grid=({NMT * NNT * NSP},1,1) block=({64 * NWM * NWN},1,1) lds={gemm_lds(kind)}"


def gen_gemm(a, name, kind):
    NWN, NH, NMT, NNT, NSP, NWM, NS = GEMM_CFG[kind]
    NWAVE = NWM * NWN
    BM = 64 * NWM
    XB = BM * 64
    NXI = BM // 16
    HW = 48 * NWN
    RB = 2 * HW
    CH = RB // 16
    WBYTES = 32 * RB
    STAGE = XB + NH * WBYTES
    NWI = NH * WBYTES // 1024
    NJ = 3 * NH
    n_wg = NMT * NNT * NSP
    kernel_begin(a, name)
    a(f"s_cmp_ge_u32 s2, {n_wg}")
    a(f"s_cbranch_scc1 L_{name}_end")
    a(f"s_load_dwordx2 s[24:25], s[0:1], {ARG_WS}")
    a(f"s_load_dwordx2 s[26:27], s[0:1], {ARG_X}")
    if kind == "qkv":
        a(f"s_load_dwordx2 s[28:29], s[0:1], {ARG_WQKV}")
    elif kind == "glu":
        a(f"s_load_dwordx2 s[28:29], s[0:1], {ARG_WG}")
        a(f"s_load_dwordx2 s[30:31], s[0:1], {ARG_WU}")
    else:
        a(f"s_load_dwordx2 s[28:29], s[0:1], {ARG_WD}")
        a(f"s_load_dwordx2 s[30:31], s[0:1], {ARG_WO}")
    if kind == "glu":
        a("s_and_b32 s33, s2, 7")
        a("s_lshl_b32 s33, s33, 2")
        a("s_lshr_b32 s34, s2, 3")
        a("s_and_b32 s32, s34, 7")
        a("s_lshr_b32 s34, s34, 3")
        a("s_add_u32 s33, s33, s34")
    else:
        a("s_and_b32 s32, s2, 15")
        a("s_lshr_b32 s33, s2, 4")
    if kind == "fin":
        a("s_mul_i32 s34, s33, 0x2aab")
        a("s_lshr_b32 s34, s34, 16")
        a("s_mul_i32 s35, s34, 6")
        a("s_sub_u32 s33, s33, s35")
    a("v_lshrrev_b32 v1, 6, v0")
    a("v_and_b32 v0, 63, v0")
    a("s_nop 0")
    a("v_readfirstlane_b32 s36, v1")
    a(f"s_mul_i32 s37, s32, {BM}")
    a("s_waitcnt lgkmcnt(0)")
    if kind == "qkv":
        make_srd(a, 4, 26, None, 2048 * 1152)
        make_srd(a, 8, 28, None, 576 * 3456)
        make_srd(a, 12, 28, None, 576 * 3456)
        a("s_mov_b32 s38, 1152")
        a("s_mov_b32 s39, 3456")
        a(f"s_mul_i32 s40, s33, {2 * HW}")
        a(f"s_add_u32 s41, s40, {HW}")
        a(f"s_mov_b32 s62, {18 // NS - 1}")
    elif kind == "glu":
        make_srd(a, 4, 26, None, 2048 * 1152)
        make_srd(a, 8, 28, None, 576 * 9216)
        make_srd(a, 12, 30, None, 576 * 9216)
        a("s_mov_b32 s38, 1152")
        a("s_mov_b32 s39, 9216")
        a(f"s_mul_i32 s40, s33, {HW}")
        a("s_mov_b32 s41, s40")
        a(f"s_mov_b32 s62, {18 // NS - 1}")
    else:
        a("s_mul_i32 s42, s34, 2304")
        a(f"s_add_u32 s42, s42, {H_OFF}")
        a(f"s_mul_i32 s60, s34, {1152 * 1152}")
        a(f"s_sub_u32 s61, {4608 * 1152}, s60")
        a("s_movk_i32 s38, 9216")
        a("s_cmp_lt_u32 s34, 4")
        a(f"s_cselect_b32 s42, s42, {O_OFF}")
        a("s_cselect_b32 s38, s38, 1152")
        a("s_cselect_b32 s60, s60, 0")
        a("s_cselect_b32 s44, s28, s30")
        a("s_cselect_b32 s45, s29, s31")
        a(f"s_cselect_b32 s61, s61, {576 * 1152}")
        a(f"s_cselect_b32 s62, {36 // NS - 1}, {20 // NS - 1}")
        a(f"s_sub_u32 s43, {WS_SIZE}, s42")
        a("s_cmp_lt_u32 s34, 4")
        a(f"s_cselect_b32 s43, s43, {2048 * 1152}")
        make_srd(a, 4, 24, "s42", "s43")
        make_srd(a, 8, 44, "s60", "s61")
        make_srd(a, 12, 44, "s60", "s61")
        a("s_mov_b32 s39, 1152")
        a(f"s_mul_i32 s40, s33, {HW}")
        a("s_mov_b32 s41, s40")
    make_srd(a, 16, 24, None, WS_SIZE)
    PERH = NWI // NH
    NTOT = NXI + NWI
    NSLOT = (NTOT + NWAVE - 1) // NWAVE
    assert NSLOT <= 5
    SRD0, SOFF0, SSTR0, SM00 = 64, 84, 89, 94
    if CH == 12:
        MAGIC, MSH = 0xaab, 15
    else:
        MAGIC, MSH = 0xe39, 16
    for e in range(NSLOT):
        sd = SRD0 + 4 * e
        vo = 32 + e
        a(f"s_add_u32 s47, s36, {e * NWAVE}")
        a(f"s_mov_b32 s{SOFF0 + e}, 0")
        a(f"s_cmp_lt_u32 s47, {NXI}")
        a(f"s_cbranch_scc0 L_{name}_w{e}")
        for q in range(4):
            a(f"s_mov_b32 s{sd + q}, s{4 + q}")
        a(f"s_mov_b32 s{SSTR0 + e}, 64")
        a(f"s_lshl_b32 s{SM00 + e}, s47, 10")
        a("v_lshrrev_b32 v1, 2, v0")
        a("s_lshl_b32 s48, s47, 4")
        a("s_add_u32 s48, s48, s37")
        a("v_add_u32 v1, s48, v1")
        a(f"v_mul_lo_u32 v{vo}, v1, s38")
        a("v_and_b32 v2, 3, v0")
        a("v_lshrrev_b32 v3, 5, v0")
        a("v_lshlrev_b32 v3, 1, v3")
        a("v_xor_b32 v2, v2, v3")
        a(f"v_lshl_add_u32 v{vo}, v2, 4, v{vo}")
        a(f"s_branch L_{name}_d{e}")
        a.label(f"L_{name}_w{e}")
        a(f"s_cmp_lt_u32 s47, {NTOT}")
        a(f"s_cbranch_scc0 L_{name}_z{e}")
        a(f"s_sub_u32 s47, s47, {NXI}")
        a(f"s_lshl_b32 s{SM00 + e}, s47, 10")
        a(f"s_add_u32 s{SM00 + e}, s{SM00 + e}, {XB}")
        a(f"s_lshl_b32 s{SSTR0 + e}, s39, 5")
        a(f"s_sub_u32 s48, s47, {PERH}")
        a(f"s_cmp_lt_u32 s47, {PERH}")
        for q in range(4):
            a(f"s_cselect_b32 s{sd + q}, s{8 + q}, s{12 + q}")
        a("s_cselect_b32 s46, s40, s41")
        a("s_cselect_b32 s47, s47, s48")
        a("s_lshl_b32 s47, s47, 6")
        a("v_add_u32 v1, s47, v0")
        a(f"v_mul_u32_u24 v2, {MAGIC}, v1")
        a(f"v_lshrrev_b32 v2, {MSH}, v2")
        a(f"v_mul_u32_u24 v3, {CH}, v2")
        a("v_sub_u32 v3, v1, v3")
        a("v_bfe_u32 v4, v2, 3, 1")
        if CH == 12:
            a("v_lshlrev_b32 v4, 1, v4")
            a("v_xor_b32 v3, v3, v4")
        else:
            a("v_lshlrev_b32 v4, 3, v4")
            a("v_xor_b32 v4, v3, v4")
            a("v_cmp_gt_u32 vcc, 16, v3")
            a("s_nop 1")
            a("v_cndmask_b32 v3, v3, v4, vcc")
        a("v_mul_lo_u32 v2, v2, s39")
        a("v_lshl_add_u32 v2, v3, 4, v2")
        a("s_lshl_b32 s48, s46, 1")
        a(f"v_add_u32 v{vo}, s48, v2")
        a(f"s_branch L_{name}_d{e}")
        a.label(f"L_{name}_z{e}")
        a(f"s_mov_b32 s{sd}, s4")
        a(f"s_mov_b32 s{sd + 1}, s5")
        a(f"s_mov_b32 s{sd + 2}, 0")
        a(f"s_mov_b32 s{sd + 3}, 0x20000")
        a(f"s_mov_b32 s{SSTR0 + e}, 0")
        a(f"s_mov_b32 s{SM00 + e}, {NS * STAGE + 2048}")
        assert NS * STAGE + 2048 + (NS - 1) * STAGE + 1024 <= 262144
        a(f"v_mov_b32 v{vo}, 0")
        a.label(f"L_{name}_d{e}")
    a(f"s_and_b32 s49, s36, {NWM - 1}")
    a(f"s_lshr_b32 s50, s36, {NWM.bit_length() - 1}")
    a("v_and_b32 v1, 15, v0")
    a("s_lshl_b32 s47, s49, 6")
    a("v_add_u32 v1, s47, v1")
    a("v_lshlrev_b32 v1, 6, v1")
    a("v_lshrrev_b32 v2, 4, v0")
    a("v_bfe_u32 v3, v0, 3, 1")
    a("v_lshlrev_b32 v3, 1, v3")
    a("v_xor_b32 v2, v2, v3")
    a("v_lshl_add_u32 v7, v2, 4, v1")
    a("v_lshrrev_b32 v1, 4, v0")
    a("v_bfe_u32 v2, v0, 2, 2")
    a("v_lshl_add_u32 v2, v1, 3, v2")
    a(f"v_mul_u32_u24 v2, {RB}, v2")
    a("v_and_b32 v3, 1, v0")
    a("v_lshl_add_u32 v2, v3, 3, v2")
    a(f"v_add_u32 v2, {XB}, v2")
    a("v_and_b32 v1, 1, v1")
    a(f"v_lshlrev_b32 v1, {1 if CH == 12 else 3}, v1")
    a("v_bfe_u32 v3, v0, 1, 1")
    a("s_mul_i32 s47, s50, 6")
    a("v_add_u32 v3, s47, v3")
    for j in range(3):
        a(f"v_add_u32 v4, {2 * j}, v3")
        a("v_xor_b32 v8, v4, v1")
        if CH != 12:
            a("v_cmp_gt_u32 vcc, 16, v4")
            a("s_nop 1")
            a("v_cndmask_b32 v8, v4, v8, vcc")
        a(f"v_lshl_add_u32 v{60 + j}, v8, 4, v2")
    ACC = 72
    XF = 40
    WF = 8
    WPW = NSLOT
    for j in range(3):
        a(f"v_add_u32 v{56 + j}, {2 * STAGE}, v{60 + j}")
    a(f"v_add_u32 v63, {2 * STAGE}, v7")

    def issue_dma(slot):
        buf = slot * STAGE
        for e in range(NSLOT):
            a(f"s_add_u32 m0, s{SM00 + e}, {buf}")
            a("s_nop 0")
            a(f"buffer_load_dwordx4 v{32 + e}, {sr(SRD0 + 4 * e, 4)}, s{SOFF0 + e} offen lds")
            a(f"s_add_u32 s{SOFF0 + e}, s{SOFF0 + e}, s{SSTR0 + e}")

    for q in range(NS - 1):
        issue_dma(q)
    for i in range(NJ * 16):
        a(f"v_mov_b32 v{ACC + i}, 0")

    def rd_x(slot, i):
        if 'nox' in ABL:
            return
        buf = (slot % 2) * STAGE
        xa = "v7" if slot < 2 else "v63"
        a(f"ds_read_b128 {vr(XF + 4 * i, 4)}, {xa} offset:{buf + i * 1024}")

    def rd_w(slot, j):
        if 'now' in ABL:
            return
        buf = (slot % 2) * STAGE
        wb = 60 if slot < 2 else 56
        off = buf + (j // 3) * WBYTES
        a(f"ds_read_b64_tr_b16 {vr(WF + 4 * j, 2)}, v{wb + j % 3} offset:{off}")
        a(f"ds_read_b64_tr_b16 {vr(WF + 4 * j + 2, 2)}, v{wb + j % 3} offset:{off + 4 * RB}")

    def stage(slot, swapped, wait, prefetch, nxt):
        nslot = (slot + 1) % NS
        if nxt:
            a(f"s_waitcnt vmcnt({wait})")
            a("s_barrier")
        if prefetch and 'nodma' not in ABL:
            issue_dma((slot + NS - 1) % NS)
        for j in range(NJ):
            for i in range(4):
                if j == 0:
                    a(f"s_waitcnt lgkmcnt({5 - i})")
                elif j == NJ - 1 and i == 0:
                    a(f"s_waitcnt lgkmcnt({2 * (NJ - 1) if nxt else 0})")
                if 'nomfma' not in ABL:
                    d = vr(ACC + (j * 4 + i) * 4, 4)
                    if swapped:
                        a(f"v_mfma_f32_16x16x32_bf16 {d}, {vr(WF + 4 * j, 4)}, {vr(XF + 4 * i, 4)}, {d}")
                    else:
                        a(f"v_mfma_f32_16x16x32_bf16 {d}, {vr(XF + 4 * i, 4)}, {vr(WF + 4 * j, 4)}, {d}")
                if j == NJ - 1 and nxt:
                    rd_x(nslot, i)
            if nxt:
                rd_w(nslot, j)

    def mainloop(swapped, tag):
        if 'noloop' in ABL:
            a("s_waitcnt vmcnt(0)")
            if 'noepi' in ABL:
                a("s_endpgm")
            return
        a(f"s_waitcnt vmcnt({(NS - 2) * WPW})")
        a("s_barrier")
        for j in range(NJ - 1):
            rd_w(0, j)
        for i in range(4):
            rd_x(0, i)
        rd_w(0, NJ - 1)
        a.label(f"L_{name}_loop{tag}")
        for slot in range(NS):
            stage(slot, swapped, (NS - 3) * WPW, True, True)
        a("s_sub_u32 s62, s62, 1")
        a("s_cmp_lg_u32 s62, 0")
        a(f"s_cbranch_scc1 L_{name}_loop{tag}")
        ntail = NS + (18 % NS if kind != "fin" else 0)
        for t in range(ntail):
            rem = ntail - 1 - t
            stage(t % NS, swapped, max(0, min(NS - 3, rem - 1)) * WPW, rem >= NS - 1, rem >= 1)
        a("s_nop 7")
        a("s_nop 1")
        if 'noepi' in ABL:
            a("s_endpgm")

    def acc(j, i, r):
        return ACC + (j * 4 + i) * 4 + r

    if kind == "qkv":
        a("s_cmp_ge_u32 s33, 6")
        a(f"s_cbranch_scc1 L_{name}_vpath")
        mainloop(True, "a")
        a("v_and_b32 v1, 15, v0")
        a("s_lshl_b32 s47, s49, 6")
        a("s_add_u32 s47, s47, s37")
        a("v_add_u32 v40, s47, v1")
        for i in range(1, 4):
            a(f"v_add_u32 v{40 + i}, {16 * i}, v40")
        a("s_cmp_ge_u32 s33, 3")
        a("s_cselect_b32 s55, 1, 0")
        a(f"s_cselect_b32 s63, 1.0, 0x{fbits(QSCALE):08x}")
        a("s_mul_i32 s56, s55, 3")
        a("s_sub_u32 s56, s33, s56")
        a("s_mul_i32 s56, s56, 192")
        a("s_mul_i32 s57, s50, 48")
        a("s_add_u32 s56, s56, s57")
        a(f"s_mul_i32 s58, s55, 0x200000")
        a(f"s_mul_i32 s59, s55, 0x40000")
        a(f"s_add_u32 s59, s59, {Q2_OFF}")
        a("v_lshrrev_b32 v1, 4, v0")
        a("v_lshlrev_b32 v1, 2, v1")
        a("v_add_u32 v1, s56, v1")
        for j in range(6):
            for pr in range(2):
                cadd = (j // 3) * 96 + (j % 3) * 16 + 2 * pr
                a(f"v_add_u32 v2, {cadd}, v1")
                a("v_mul_u32_u24 v3, 0xe39, v2")
                a("v_lshrrev_b32 v3, 16, v3")
                a("v_mul_u32_u24 v4, 18, v3")
                a("v_sub_u32 v4, v2, v4")
                a("v_lshrrev_b32 v8, 3, v4")
                a("v_lshlrev_b32 v8, 15, v8")
                a("v_lshl_add_u32 v8, v3, 16, v8")
                a("v_and_b32 v9, 7, v4")
                a("v_lshl_add_u32 v8, v9, 1, v8")
                a("v_add_u32 v8, s58, v8")
                a("v_lshlrev_b32 v9, 13, v3")
                a("v_add_u32 v9, s59, v9")
                a("v_cmp_eq_u32 vcc, 16, v4")
                a("v_mov_b32 v10, 16")
                a("v_mov_b32 v11, 4")
                a("v_cndmask_b32 v8, v8, v9, vcc")
                a("v_cndmask_b32 v10, v10, v11, vcc")
                for i in range(4):
                    a(f"v_mad_u32_u24 v{12 + i}, v{40 + i}, v10, v8")
                    a(f"v_mul_f32 v20, s63, v{acc(j, i, 2 * pr)}")
                    a(f"v_mul_f32 v21, s63, v{acc(j, i, 2 * pr + 1)}")
                    a(f"v_cvt_pk_bf16_f32 v{16 + i}, v20, v21")
                for i in range(4):
                    a(f"buffer_store_dword v{16 + i}, v{12 + i}, s[16:19], 0 offen")
                a("s_nop 0")
        a("s_endpgm")
        a.label(f"L_{name}_vpath")
        mainloop(False, "b")
        a("v_bfe_u32 v1, v0, 4, 1")
        a("v_lshlrev_b32 v1, 3, v1")
        a("v_bfe_u32 v2, v0, 5, 1")
        a("v_lshl_add_u32 v1, v2, 2, v1")
        a("s_lshl_b32 s47, s49, 6")
        a("s_add_u32 s47, s47, s37")
        a("v_add_u32 v1, s47, v1")
        a("v_lshlrev_b32 v40, 1, v1")
        a("s_sub_u32 s56, s33, 6")
        a("s_mul_i32 s56, s56, 192")
        a("s_mul_i32 s57, s50, 48")
        a("s_add_u32 s56, s56, s57")
        a("v_and_b32 v1, 15, v0")
        a("v_add_u32 v1, s56, v1")
        a("s_mov_b32 s57, 73728")
        for j in range(6):
            cadd = (j // 3) * 96 + (j % 3) * 16
            a(f"v_add_u32 v2, {cadd}, v1")
            a("v_mul_u32_u24 v3, 0xe39, v2")
            a("v_lshrrev_b32 v3, 16, v3")
            a("v_mul_u32_u24 v4, 18, v3")
            a("v_sub_u32 v4, v2, v4")
            a("v_mul_lo_u32 v8, v3, s57")
            a("v_lshl_add_u32 v8, v4, 12, v8")
            a(f"v_add_u32 v8, {VT_OFF}, v8")
            a("v_add_u32 v8, v8, v40")
            for i in range(4):
                a(f"v_cvt_pk_bf16_f32 v{16 + 2 * i}, v{acc(j, i, 0)}, v{acc(j, i, 1)}")
                a(f"v_cvt_pk_bf16_f32 v{17 + 2 * i}, v{acc(j, i, 2)}, v{acc(j, i, 3)}")
            for i in range(4):
                a(f"buffer_store_dwordx2 {vr(16 + 2 * i, 2)}, v8, s[16:19], 0 offen offset:{32 * i}")
            a("s_nop 0")
        a("s_endpgm")
    elif kind == "glu":
        mainloop(True, "a")
        PIT = HW * 2 + 16
        a("s_barrier")
        a("v_and_b32 v1, 15, v0")
        a("s_lshl_b32 s47, s49, 6")
        a("v_add_u32 v1, s47, v1")
        a(f"v_mul_u32_u24 v1, {PIT}, v1")
        a("v_lshrrev_b32 v2, 4, v0")
        a("v_lshl_add_u32 v1, v2, 3, v1")
        a("s_mul_i32 s56, s50, 96")
        a("v_add_u32 v1, s56, v1")
        a("s_mov_b32 s57, 0xffff0000")
        for i in range(4):
            for jj in range(3):
                t = 8 + (jj & 1) * 16
                a(f"v_cvt_pk_bf16_f32 v{t}, v{acc(jj, i, 0)}, v{acc(jj, i, 1)}")
                a(f"v_cvt_pk_bf16_f32 v{t + 1}, v{acc(jj, i, 2)}, v{acc(jj, i, 3)}")
                a(f"v_cvt_pk_bf16_f32 v{t + 2}, v{acc(jj + 3, i, 0)}, v{acc(jj + 3, i, 1)}")
                a(f"v_cvt_pk_bf16_f32 v{t + 3}, v{acc(jj + 3, i, 2)}, v{acc(jj + 3, i, 3)}")
                a(f"v_lshlrev_b32 v{t + 4}, 16, v{t}")
                a(f"v_and_b32 v{t + 5}, s57, v{t}")
                a(f"v_lshlrev_b32 v{t + 6}, 16, v{t + 1}")
                a(f"v_and_b32 v{t + 7}, s57, v{t + 1}")
                a(f"v_lshlrev_b32 v{t + 8}, 16, v{t + 2}")
                a(f"v_and_b32 v{t + 9}, s57, v{t + 2}")
                a(f"v_lshlrev_b32 v{t + 10}, 16, v{t + 3}")
                a(f"v_and_b32 v{t + 11}, s57, v{t + 3}")
                for r in range(4):
                    a(f"v_mul_f32 v{t + 4 + r}, v{t + 4 + r}, v{t + 8 + r}")
                a(f"v_cvt_pk_bf16_f32 v{t + 12}, v{t + 4}, v{t + 5}")
                a(f"v_cvt_pk_bf16_f32 v{t + 13}, v{t + 6}, v{t + 7}")
                a(f"ds_write_b64 v1, {vr(t + 12, 2)} offset:{i * 16 * PIT + jj * 32}")
        a("s_waitcnt lgkmcnt(0)")
        a("s_barrier")
        NT = 64 * NWAVE
        NQ = BM * CH // NT
        a("s_lshl_b32 s47, s36, 6")
        a("v_add_u32 v1, s47, v0")
        a("s_lshl_b32 s56, s40, 1")
        a(f"s_add_u32 s56, s56, {H_OFF}")
        a("s_mul_i32 s57, s37, 9216")
        a("s_add_u32 s56, s56, s57")
        a("s_mov_b32 s57, 9216")
        a("s_mov_b32 s58, 0x38e38e39")
        for q in range(NQ):
            a(f"v_add_u32 v2, {q * NT}, v1")
            a("v_mul_hi_u32 v3, v2, s58")
            a("v_lshrrev_b32 v3, 2, v3")
            a(f"v_mul_u32_u24 v4, {CH}, v3")
            a("v_sub_u32 v4, v2, v4")
            a(f"v_mul_u32_u24 v5, {PIT}, v3")
            a("v_lshl_add_u32 v5, v4, 4, v5")
            a(f"ds_read_b128 {vr(72 + 4 * q, 4)}, v5")
            a("v_mul_lo_u32 v3, v3, s57")
            a(f"v_lshl_add_u32 v{40 + q}, v4, 4, v3")
        for q in range(NQ):
            a(f"s_waitcnt lgkmcnt({NQ - 1 - q})")
            a(f"buffer_store_dwordx4 {vr(72 + 4 * q, 4)}, v{40 + q}, s[16:19], s56 offen")
        a("s_endpgm")
    else:
        mainloop(True, "a")
        a("v_and_b32 v1, 15, v0")
        a("s_lshl_b32 s47, s49, 6")
        a("s_add_u32 s47, s47, s37")
        a("v_add_u32 v1, s47, v1")
        a("v_mul_u32_u24 v1, 2304, v1")
        a("v_lshrrev_b32 v2, 4, v0")
        a("v_lshl_add_u32 v1, v2, 4, v1")
        a("s_mul_i32 s56, s50, 48")
        a("s_add_u32 s56, s56, s40")
        a("s_lshl_b32 s56, s56, 2")
        a(f"s_mul_i32 s57, s34, {P_STRIDE}")
        a("s_add_u32 s56, s56, s57")
        a(f"s_add_u32 s56, s56, {P_OFF}")
        a("v_add_u32 v1, s56, v1")
        for i in range(4):
            a(f"s_mov_b32 s58, {i * 16 * 2304}")
            for j in range(NJ):
                off = ((j // 3) * HW + (j % 3) * 16) * 4
                a(f"buffer_store_dwordx4 {vr(acc(j, i, 0), 4)}, v1, s[16:19], s58 offen offset:{off}")
        a("s_endpgm")
    a.label(f"L_{name}_end")
    a("s_endpgm")
    kernel_desc(a, name, ACC + NJ * 16, 102)


A_VT = 65536
A_VSTR = 4112
A_K2 = A_VT + 19 * A_VSTR
A_LDS = A_K2 + 8192


def gen_attn(a, name):
    kernel_begin(a, name)
    a("s_cmp_ge_u32 s2, 256")
    a(f"s_cbranch_scc1 L_{name}_end")
    a(f"s_load_dwordx2 s[24:25], s[0:1], {ARG_WS}")
    a("s_and_b32 s32, s2, 31")
    a("s_lshr_b32 s33, s2, 5")
    a("v_lshrrev_b32 v1, 6, v0")
    a("v_and_b32 v0, 63, v0")
    a("s_nop 0")
    a("v_readfirstlane_b32 s36, v1")
    a("s_waitcnt lgkmcnt(0)")
    make_srd(a, 4, 24, None, WS_SIZE)
    a("v_lshlrev_b32 v1, 4, v0")
    a("s_lshl_b32 s40, s32, 16")
    a(f"s_add_u32 s40, s40, {K16_OFF}")
    a("s_lshl_b32 s41, s36, 10")
    a("s_add_u32 s40, s40, s41")
    for t in range(8):
        a(f"s_add_u32 m0, s41, {t * 8192}")
        a(f"s_add_u32 s42, s40, {t * 8192}")
        a("buffer_load_dwordx4 v1, s[4:7], s42 offen lds")
    a("s_mul_i32 s40, s32, 73728")
    a(f"s_add_u32 s40, s40, {VT_OFF}")
    a("s_add_u32 s40, s40, s41")
    a("s_lshr_b32 s43, s36, 2")
    a(f"s_mul_i32 s43, s43, {A_VSTR}")
    a("s_and_b32 s44, s36, 3")
    a("s_lshl_b32 s44, s44, 10")
    a("s_add_u32 s43, s43, s44")
    for t in range(9):
        a(f"s_add_u32 m0, s43, {A_VT + 2 * t * A_VSTR}")
        a(f"s_add_u32 s42, s40, {t * 8192}")
        a("buffer_load_dwordx4 v1, s[4:7], s42 offen lds")
    a("s_lshl_b32 s40, s32, 13")
    a(f"s_add_u32 s40, s40, {K2_OFF}")
    a("s_add_u32 s40, s40, s41")
    a(f"s_add_u32 m0, s41, {A_K2}")
    a("s_nop 0")
    a("buffer_load_dwordx4 v1, s[4:7], s40 offen lds")
    a("v_mov_b32 v2, 0x3f803f80")
    a("v_mov_b32 v3, 0x3f803f80")
    a("s_lshl_b32 s42, s36, 9")
    a("v_lshlrev_b32 v4, 3, v0")
    a("v_add_u32 v4, s42, v4")
    a(f"v_add_u32 v4, {A_VT + 18 * A_VSTR}, v4")
    a("ds_write_b64 v4, v[2:3]")
    QF1, QF2 = 8, 12
    a("v_and_b32 v2, 31, v0")
    a("s_lshl_b32 s42, s33, 8")
    a("s_lshl_b32 s43, s36, 5")
    a("s_add_u32 s42, s42, s43")
    a("v_add_u32 v2, s42, v2")
    a("v_lshrrev_b32 v3, 5, v0")
    a("v_lshlrev_b32 v4, 4, v2")
    a("v_lshl_add_u32 v4, v3, 15, v4")
    a("s_lshl_b32 s42, s32, 16")
    a(f"s_add_u32 s42, s42, {Q16_OFF}")
    a(f"buffer_load_dwordx4 {vr(QF1, 4)}, v4, s[4:7], s42 offen")
    a("v_lshlrev_b32 v4, 2, v2")
    a("s_lshl_b32 s42, s32, 13")
    a(f"s_add_u32 s42, s42, {Q2_OFF}")
    a(f"buffer_load_dword v{QF2}, v4, s[4:7], s42 offen")
    for r in range(1, 4):
        a(f"v_mov_b32 v{QF2 + r}, 0")
    a("v_and_b32 v4, 31, v0")
    a("v_lshlrev_b32 v5, 4, v4")
    a("v_lshl_add_u32 v5, v3, 15, v5")
    a("v_lshlrev_b32 v6, 2, v4")
    a(f"v_add_u32 v6, {A_K2}, v6")
    a("v_min_u32 v7, 18, v4")
    a(f"v_mul_u32_u24 v7, {A_VSTR}, v7")
    a("v_lshl_add_u32 v7, v3, 4, v7")
    a(f"v_add_u32 v7, {A_VT}, v7")
    KF = 16
    K2F = 24
    VF = 32
    SA, SB = 48, 80
    PF = 112
    OA = 128
    VT1, VT2, VAL = 144, 145, 146
    NEGM = 152
    for t in range(2):
        for r in range(1, 4):
            a(f"v_mov_b32 v{K2F + 4 * t + r}, 0")
    for r in range(16):
        a(f"v_mov_b32 v{OA + r}, 0")
    a("s_waitcnt vmcnt(0) lgkmcnt(0)")
    a("v_cmp_gt_u32 vcc, 32, v0")
    a("s_nop 1")
    a(f"v_cndmask_b32 v{QF2}, 0, v{QF2}, vcc")
    a("s_barrier")

    def read_K(off_keys):
        for t in range(2):
            a(f"ds_read_b128 {vr(KF + 4 * t, 4)}, v5 offset:{(off_keys + 32 * t) * 16}")
        for t in range(2):
            a(f"ds_read_b32 v{K2F + 4 * t}, v6 offset:{(off_keys + 32 * t) * 4}")

    def read_V(off_keys):
        for b in range(4):
            a(f"ds_read_b128 {vr(VF + 4 * b, 4)}, v7 offset:{(off_keys + 16 * b) * 2}")

    def qk(S, c=None):
        for t in range(2):
            d = vr(S + 16 * t, 16)
            a(f"v_mfma_f32_32x32x16_bf16 {d}, {vr(KF + 4 * t, 4)}, {vr(QF1, 4)}, {c if c else vr(NEGM, 16)}")
            a(f"v_mfma_f32_32x32x16_bf16 {d}, {vr(K2F + 4 * t, 4)}, {vr(QF2, 4)}, {d}")

    def tile_max(S):
        a(f"v_max3_f32 v{VT1}, v{S}, v{S + 1}, v{S + 2}")
        for k in range(14):
            a(f"v_max3_f32 v{VT1}, v{S + 3 + 2 * k}, v{S + 4 + 2 * k}, v{VT1}")
        a(f"v_max_f32 v{VT1}, v{S + 31}, v{VT1}")

    def cross_half_max():
        a(f"v_mov_b32 v{VT2}, v{VT1}")
        a("s_nop 1")
        a(f"v_permlane32_swap_b32 v{VT1}, v{VT2}")
        a("s_nop 1")
        a(f"v_max_f32 v{VT1}, v{VT1}, v{VT2}")

    rare = []

    def pv_mfma(b):
        d = vr(OA, 16)
        return f"v_mfma_f32_32x32x16_bf16 {d}, {vr(VF + 4 * b, 4)}, {vr(PF + 4 * b, 4)}, {d}"

    def qk_mfma(S, n):
        t = n >> 1
        d = vr(S + 16 * t, 16)
        if n & 1:
            return f"v_mfma_f32_32x32x16_bf16 {d}, {vr(K2F + 4 * t, 4)}, {vr(QF2, 4)}, {d}"
        return f"v_mfma_f32_32x32x16_bf16 {d}, {vr(KF + 4 * t, 4)}, {vr(QF1, 4)}, {vr(NEGM, 16)}"

    def iteration(S, Sn, tag, koff, voff, first=False):
        mx = [f"v_max3_f32 v{VT1}, v{S}, v{S + 1}, v{S + 2}"]
        for k in range(14):
            mx.append(f"v_max3_f32 v{VT1}, v{S + 3 + 2 * k}, v{S + 4 + 2 * k}, v{VT1}")
        mx.append(f"v_max_f32 v{VT1}, v{S + 31}, v{VT1}")
        if not first:
            a("s_waitcnt lgkmcnt(4)")
        for k in range(16):
            if k % 4 == 0 and not first and 'anomfma' not in ABL:
                a(pv_mfma(k // 4))
            if 'anomax' not in ABL:
                a(mx[k])
        if not first:
            read_V(voff)
        a(f"v_cmp_lt_f32 vcc, 0x41000000, v{VT1}")
        a(f"s_cbranch_vccnz L_{name}_rs{tag}")
        a.label(f"L_{name}_ct{tag}")
        rare.append((S, tag))
        a("s_waitcnt lgkmcnt(4)")
        for k in range(32):
            if k % 8 == 0 and 'anomfma' not in ABL:
                a(qk_mfma(Sn, k // 8))
            if 'anoexp' not in ABL:
                a(f"v_exp_f32 v{S + k}, v{S + k}")
        read_K(koff)
        for k in range(16):
            a(f"v_cvt_pk_bf16_f32 v{PF + k}, v{S + 2 * k}, v{S + 2 * k + 1}")

    read_K(0)
    a("s_waitcnt lgkmcnt(0)")
    qk(SA, "0")
    read_V(0)
    read_K(64)
    a("s_nop 15")
    tile_max(SA)
    cross_half_max()
    for k in range(32):
        a(f"v_sub_f32 v{SA + k}, v{SA + k}, v{VT1}")
    for r in range(16):
        a(f"v_sub_f32 v{NEGM + r}, 0, v{VT1}")
    a("s_mov_b32 s51, 0")
    a("s_nop 1")
    a("s_waitcnt lgkmcnt(0)")
    read_V(0)
    for k in range(32):
        if k % 8 == 0:
            a(qk_mfma(SB, k // 8))
        a(f"v_exp_f32 v{SA + k}, v{SA + k}")
    read_K(128)
    for k in range(16):
        a(f"v_cvt_pk_bf16_f32 v{PF + k}, v{SA + 2 * k}, v{SA + 2 * k + 1}")
    a.label(f"L_{name}_loop")
    iteration(SB, SA, "a", 192, 64)
    iteration(SA, SB, "b", 256, 128)
    a("v_add_u32 v5, 2048, v5")
    a("v_add_u32 v6, 512, v6")
    a("v_add_u32 v7, 256, v7")
    a("s_add_u32 s51, s51, 1")
    a(f"s_cmp_lt_u32 s51, {1 if 'anoloop' in ABL else 15}")
    a(f"s_cbranch_scc1 L_{name}_loop")
    iteration(SB, SA, "c", 192, 64)
    a("s_waitcnt lgkmcnt(0)")
    a("s_nop 0")
    for b in range(4):
        a(pv_mfma(b))
    a(f"s_branch L_{name}_fin")
    for (S, tag) in rare:
        a.label(f"L_{name}_rs{tag}")
        a("s_nop 15")
        cross_half_max()
        a(f"v_max_f32 v{VT1}, 0, v{VT1}")
        a(f"v_sub_f32 v{VAL}, 0, v{VT1}")
        a(f"v_exp_f32 v{VAL}, v{VAL}")
        for k in range(32):
            a(f"v_sub_f32 v{S + k}, v{S + k}, v{VT1}")
        for r in range(16):
            a(f"v_sub_f32 v{NEGM + r}, v{NEGM + r}, v{VT1}")
        for r in range(12):
            a(f"v_mul_f32 v{OA + r}, v{OA + r}, v{VAL}")
        a("s_nop 1")
        a(f"s_branch L_{name}_ct{tag}")
    a.label(f"L_{name}_fin")
    a("s_nop 15")
    a("s_nop 7")
    a(f"v_mov_b32 v{VT1}, v{OA + 10}")
    a(f"v_mov_b32 v{VT2}, v{OA + 10}")
    a("s_nop 1")
    a(f"v_permlane32_swap_b32 v{VT1}, v{VT2}")
    a("s_nop 1")
    a(f"v_rcp_f32 v{VT1}, v{VT1}")
    a("s_nop 0")
    for r in range(12):
        a(f"v_mul_f32 v{OA + r}, v{OA + r}, v{VT1}")
    for k in range(6):
        a(f"v_cvt_pk_bf16_f32 v{PF + k}, v{OA + 2 * k}, v{OA + 2 * k + 1}")
    a("v_mul_u32_u24 v4, 1152, v2")
    a("v_lshl_add_u32 v4, v3, 3, v4")
    a("s_mul_i32 s42, s32, 36")
    a(f"s_add_u32 s42, s42, {O_OFF}")
    a(f"buffer_store_dword v{PF}, v4, s[4:7], s42 offen")
    a(f"buffer_store_dword v{PF + 1}, v4, s[4:7], s42 offen offset:4")
    a(f"buffer_store_dword v{PF + 2}, v4, s[4:7], s42 offen offset:16")
    a(f"buffer_store_dword v{PF + 3}, v4, s[4:7], s42 offen offset:20")
    a("v_cmp_gt_u32 vcc, 32, v0")
    a("s_and_saveexec_b64 s[44:45], vcc")
    a(f"buffer_store_dword v{PF + 4}, v4, s[4:7], s42 offen offset:32")
    a.label(f"L_{name}_end")
    a("s_endpgm")
    kernel_desc(a, name, 168)


def gen_reduce(a, name):
    kernel_begin(a, name)
    a("s_cmp_ge_u32 s2, 512")
    a(f"s_cbranch_scc1 L_{name}_end")
    a(f"s_load_dwordx2 s[24:25], s[0:1], {ARG_WS}")
    a(f"s_load_dwordx2 s[26:27], s[0:1], {ARG_X}")
    a(f"s_load_dwordx2 s[28:29], s[0:1], {ARG_GW}")
    a(f"s_load_dwordx2 s[30:31], s[0:1], {ARG_OUT}")
    a("v_lshrrev_b32 v1, 6, v0")
    a("v_and_b32 v0, 63, v0")
    a("s_nop 0")
    a("v_readfirstlane_b32 s36, v1")
    a("s_lshl_b32 s37, s2, 2")
    a("s_add_u32 s37, s37, s36")
    a("s_waitcnt lgkmcnt(0)")
    make_srd(a, 4, 24, None, WS_SIZE)
    make_srd(a, 8, 26, None, 2048 * 1152)
    make_srd(a, 12, 28, None, 1152)
    make_srd(a, 16, 30, None, 2048 * 1152)
    a("v_lshlrev_b32 v1, 3, v0")
    a("v_lshlrev_b32 v2, 4, v0")
    a("s_mul_i32 s38, s37, 1152")
    a("s_mul_i32 s39, s37, 2304")
    a("s_mov_b32 s57, 0xffff0000")
    a("v_cmp_gt_u32 s[40:41], 16, v0")
    for c in range(3):
        if c == 2:
            a("s_mov_b64 s[42:43], exec")
            a("s_mov_b64 exec, s[40:41]")
        a(f"buffer_load_dwordx2 {vr(4 + 2 * c, 2)}, v1, s[8:11], s38 offen offset:{512 * c}")
        a(f"buffer_load_dwordx2 {vr(10 + 2 * c, 2)}, v1, s[12:15], 0 offen offset:{512 * c}")
        if c == 2:
            a("s_mov_b64 exec, s[42:43]")
    for c in range(3):
        if c == 2:
            a("s_mov_b64 exec, s[40:41]")
        for sp in range(5):
            a(f"s_add_u32 s44, s39, {P_OFF + sp * P_STRIDE}")
            a(f"buffer_load_dwordx4 {vr(32 + (c * 5 + sp) * 4, 4)}, v2, s[4:7], s44 offen offset:{1024 * c}")
        if c == 2:
            a("s_mov_b64 exec, s[42:43]")
    a("v_mov_b32 v16, 0")
    a("s_waitcnt vmcnt(15)")
    for c in range(3):
        if c == 2:
            a("s_mov_b64 exec, s[40:41]")
        for h in range(2):
            xr, gr = 4 + 2 * c + h, 10 + 2 * c + h
            a(f"v_lshlrev_b32 v17, 16, v{xr}")
            a(f"v_and_b32 v18, s57, v{xr}")
            a(f"v_lshlrev_b32 v19, 16, v{gr}")
            a(f"v_and_b32 v20, s57, v{gr}")
            a("v_mul_f32 v17, v17, v19")
            a("v_mul_f32 v18, v18, v20")
            a("v_cvt_pk_bf16_f32 v17, v17, v18")
            a("v_lshlrev_b32 v18, 16, v17")
            a("v_and_b32 v17, s57, v17")
            a("v_add_f32 v16, v16, v18")
            a("v_add_f32 v16, v16, v17")
        if c == 2:
            a("s_mov_b64 exec, s[42:43]")
    for m in (1, 2, 4, 8, 16):
        a(f"ds_swizzle_b32 v17, v16 offset:0x{(m << 10) | 0x1f:04x}")
        a("s_waitcnt lgkmcnt(0)")
        a("v_add_f32 v16, v16, v17")
    a("v_mov_b32 v17, v16")
    a("s_nop 1")
    a("v_permlane32_swap_b32 v16, v17")
    a("s_nop 1")
    a("v_add_f32 v16, v16, v17")
    a("v_cvt_pk_bf16_f32 v16, v16, v16")
    a("v_and_b32 v16, s57, v16")
    a("v_mul_f32 v16, 0xbfb8aa3b, v16")
    a("v_exp_f32 v16, v16")
    a("s_nop 0")
    a("v_add_f32 v16, 1.0, v16")
    a("v_rcp_f32 v16, v16")
    a("s_nop 0")
    a("v_cvt_pk_bf16_f32 v16, v16, v16")
    a("v_and_b32 v16, s57, v16")
    a("v_sub_f32 v17, 1.0, v16")
    a("v_cvt_pk_bf16_f32 v17, v17, v17")
    a("v_and_b32 v17, s57, v17")
    a("s_waitcnt vmcnt(0)")
    for c in range(3):
        for r in range(4):
            b0 = 32 + (c * 5) * 4 + r
            a(f"v_add_f32 v{b0}, v{b0}, v{b0 + 4}")
            a(f"v_add_f32 v{b0 + 8}, v{b0 + 8}, v{b0 + 12}")
            a(f"v_add_f32 v{b0}, v{b0}, v{b0 + 8}")
            a(f"v_cvt_pk_bf16_f32 v18, v{b0}, v{b0 + 16}")
            a("v_lshlrev_b32 v19, 16, v18")
            a("v_and_b32 v18, s57, v18")
            a("v_mul_f32 v18, v18, v16")
            a("v_mul_f32 v19, v19, v17")
            a("v_cvt_pk_bf16_f32 v18, v18, v19")
            a("v_lshlrev_b32 v19, 16, v18")
            a("v_and_b32 v18, s57, v18")
            a(f"v_add_f32 v{b0}, v18, v19")
        b0 = 32 + (c * 5) * 4
        a(f"v_cvt_pk_bf16_f32 v{20 + 2 * c}, v{b0}, v{b0 + 1}")
        a(f"v_cvt_pk_bf16_f32 v{21 + 2 * c}, v{b0 + 2}, v{b0 + 3}")
    for c in range(3):
        if c == 2:
            a("s_mov_b64 exec, s[40:41]")
        a(f"buffer_store_dwordx2 {vr(20 + 2 * c, 2)}, v1, s[16:19], s38 offen offset:{512 * c}")
    a.label(f"L_{name}_end")
    a("s_endpgm")
    kernel_desc(a, name, 96)


def main():
    hdr = open("cdna_kernels/" + KNAME + ".s.ref").read().split("\n")
    out = []
    for ln in hdr:
        if ln.startswith("; @launch"):
            break
        out.append(ln)
    k_qkv = "gm_qkv_kernel"
    k_glu = "gm_glu_kernel"
    k_att = "gm_att_kernel"
    k_fin = "gm_fin_kernel"
    k_red = KNAME + "_kernel"
    out.append(f"; @launch kernel={k_qkv} {gemm_launch('qkv')}")
    out.append(f"; @launch kernel={k_glu} {gemm_launch('glu')}")
    out.append(f"; @launch kernel={k_att} grid=(256,1,1) block=(512,1,1) lds={A_LDS + 4096}")
    out.append(f"; @launch kernel={k_fin} {gemm_launch('fin')}")
    out.append(f"; @launch kernel={k_red} grid=(512,1,1) block=(256,1,1) lds=0")
    out.append('.amdgcn_target "amdgcn-amd-amdhsa--gfx950"')
    a = Asm()
    gen_gemm(a, k_qkv, "qkv")
    gen_gemm(a, k_glu, "glu")
    gen_attn(a, k_att)
    gen_gemm(a, k_fin, "fin")
    gen_reduce(a, k_red)
    txt = "\n".join(out) + "\n" + a.text()
    dst = sys.argv[1] if len(sys.argv) > 1 else "cdna_kernels/" + KNAME + ".s"
    open(dst, "w").write(txt)
    print("wrote", dst, len(txt))


if __name__ == "__main__":
    main()
```

```python
import math
import sys
import os
ABL = os.environ.get('ABL', '')

KNAME = "gated_mix__mha_block__glu_gated_bilinear__prompt"

Q16_OFF = 0x000000
K16_OFF = 0x200000
Q2_OFF = 0x400000
K2_OFF = 0x440000
VT_OFF = 0x480000
O_OFF = 0x700000
H_OFF = 0x1000000
P_OFF = 0x3000000
WS_SIZE = 0x10000000
P_STRIDE = 2048 * 576 * 4

ARG_X, ARG_WQKV, ARG_WO, ARG_BX, ARG_WG, ARG_WU, ARG_WD, ARG_GW, ARG_OUT, ARG_DBG, ARG_WS = [8 * i for i in range(11)]


class Asm:
    def __init__(self):
        self.lines = []

    def __call__(self, s):
        self.lines.append("    " + s)

    def label(self, s):
        self.lines.append(s + ":")

    def raw(self, s):
        self.lines.append(s)

    def text(self):
        return "\n".join(self.lines) + "\n"


def vr(b, n):
    return f"v[{b}:{b + n - 1}]"


def sr(b, n):
    return f"s[{b}:{b + n - 1}]"


def kernel_begin(a, name):
    a.raw(".text")
    a.raw(f".globl {name}")
    a.raw(".p2align 8")
    a.raw(f".type {name},@function")
    a.label(name)


def kernel_desc(a, name, nvgpr, nsgpr=96):
    a.raw('.section .rodata,"a"')
    a.raw(".p2align 6")
    a.raw(f".amdhsa_kernel {name}")
    a.raw(f"  .amdhsa_next_free_vgpr {nvgpr}")
    a.raw(f"  .amdhsa_next_free_sgpr {nsgpr}")
    a.raw(f"  .amdhsa_accum_offset {((nvgpr + 3) // 4) * 4}")
    a.raw("  .amdhsa_group_segment_fixed_size 0")
    a.raw("  .amdhsa_kernarg_size 88")
    a.raw("  .amdhsa_user_sgpr_count 2")
    a.raw("  .amdhsa_user_sgpr_kernarg_segment_ptr 1")
    a.raw("  .amdhsa_system_sgpr_workgroup_id_x 1")
    a.raw(".end_amdhsa_kernel")


def make_srd(a, d, base_pair, off_sgpr_or_imm, nrec):
    lo, hi = base_pair, base_pair + 1
    if off_sgpr_or_imm is None:
        a(f"s_mov_b32 s{d}, s{lo}")
        a(f"s_and_b32 s{d + 1}, s{hi}, 0xffff")
    else:
        a(f"s_add_u32 s{d}, s{lo}, {off_sgpr_or_imm}")
        a(f"s_addc_u32 s{d + 1}, s{hi}, 0")
        a(f"s_and_b32 s{d + 1}, s{d + 1}, 0xffff")
    a(f"s_mov_b32 s{d + 2}, {nrec}")
    a(f"s_mov_b32 s{d + 3}, 0x20000")


QSCALE = math.log2(math.e) / math.sqrt(18.0)
import struct


def fbits(x):
    return struct.unpack("<I", struct.pack("<f", x))[0]


GEMM_CFG = {
    "qh": dict(NWN=3, NH=1, NJH=2, NWM=4, MI=4, NS=6, KU=2),
    "glu": dict(NWN=3, NH=2, NJH=3, NWM=4, MI=4, NS=4, KU=1),
    "fin": dict(NWN=2, NH=2, NJH=3, NWM=4, MI=2, NS=4, KU=1),
    "wo": dict(NWN=2, NH=1, NJH=3, NWM=2, MI=2, NS=4, KU=1),
}


def gemm_lds(kind):
    c = GEMM_CFG[kind]
    return c["NS"] * (c["NWM"] * c["MI"] * 1024 + c["NH"] * 32 * 32 * c["NJH"] * c["NWN"])


def gemm_phase(a, name, kind):
    c = GEMM_CFG[kind]
    NWN, NH, NJH, NWM, MI, NS = c["NWN"], c["NH"], c["NJH"], c["NWM"], c["MI"], c["NS"]
    KU = c["KU"]
    NSS = NS // KU
    name = name + "_" + kind
    NWAVE = NWM * NWN
    WSH = (16 * MI).bit_length() - 1
    BM = 16 * MI * NWM
    XB = BM * 64
    NXI = BM // 16
    HW = 16 * NJH * NWN
    RB = 2 * HW
    CH = RB // 16
    WBYTES = 32 * RB
    STAGE = XB + NH * WBYTES
    NWI = NH * WBYTES // 1024
    NJ = NJH * NH
    a(f"s_load_dwordx2 s[24:25], s[0:1], {ARG_WS}")
    a(f"s_load_dwordx2 s[26:27], s[0:1], {ARG_X}")
    if kind == "qh":
        a(f"s_load_dwordx2 s[28:29], s[0:1], {ARG_WQKV}")
    elif kind == "glu":
        a(f"s_load_dwordx2 s[28:29], s[0:1], {ARG_WG}")
        a(f"s_load_dwordx2 s[30:31], s[0:1], {ARG_WU}")
    elif kind == "fin":
        a(f"s_load_dwordx2 s[28:29], s[0:1], {ARG_WD}")
    else:
        a(f"s_load_dwordx2 s[28:29], s[0:1], {ARG_WO}")
    if kind in ("glu", "qh"):
        a("s_and_b32 s33, s2, 7")
        a("s_lshl_b32 s33, s33, 2")
        a("s_lshr_b32 s34, s2, 3")
        a("s_and_b32 s32, s34, 7")
        a("s_lshr_b32 s34, s34, 3")
        a("s_add_u32 s33, s33, s34")
    elif kind == "fin":
        a("s_sub_u32 s35, s2, 256")
        a("s_and_b32 s32, s35, 15")
        a("s_lshr_b32 s33, s35, 4")
        a("s_mul_i32 s34, s33, 0x5556")
        a("s_lshr_b32 s34, s34, 16")
        a("s_mul_i32 s35, s34, 3")
        a("s_sub_u32 s33, s33, s35")
    else:
        a("s_and_b32 s32, s2, 31")
        a("s_lshr_b32 s33, s2, 5")
        a("s_mov_b32 s34, 4")
    a(f"s_mul_i32 s37, s32, {BM}")
    a("s_waitcnt lgkmcnt(0)")
    if kind == "qh":
        make_srd(a, 4, 26, None, 2048 * 1152)
        make_srd(a, 8, 28, None, 576 * 3456)
        make_srd(a, 12, 28, None, 576 * 3456)
        a("s_mov_b32 s38, 1152")
        a("s_mov_b32 s39, 3456")
        a("s_mul_i32 s40, s33, 36")
        a("s_mov_b32 s41, s40")
        a(f"s_mov_b32 s62, {18 // NS - 1}")
    elif kind == "glu":
        make_srd(a, 4, 26, None, 2048 * 1152)
        make_srd(a, 8, 28, None, 576 * 9216)
        make_srd(a, 12, 30, None, 576 * 9216)
        a("s_mov_b32 s38, 1152")
        a("s_mov_b32 s39, 9216")
        a(f"s_mul_i32 s40, s33, {RB}")
        a("s_mov_b32 s41, s40")
        a(f"s_mov_b32 s62, {18 // NS - 1}")
    elif kind == "fin":
        a("s_mul_i32 s42, s34, 2304")
        a(f"s_add_u32 s42, s42, {H_OFF}")
        a(f"s_mul_i32 s60, s34, {1152 * 1152}")
        a(f"s_sub_u32 s61, {4608 * 1152}, s60")
        a(f"s_sub_u32 s43, {WS_SIZE}, s42")
        make_srd(a, 4, 24, "s42", "s43")
        make_srd(a, 8, 28, "s60", "s61")
        make_srd(a, 12, 28, "s60", "s61")
        a("s_movk_i32 s38, 9216")
        a("s_mov_b32 s39, 1152")
        a(f"s_mul_i32 s40, s33, {NH * RB}")
        a(f"s_add_u32 s41, s40, {RB}")
        a(f"s_mov_b32 s62, {36 // NS - 1}")
    else:
        make_srd(a, 4, 24, f"{O_OFF}", 2048 * 1152)
        make_srd(a, 8, 28, None, 576 * 1152)
        make_srd(a, 12, 28, None, 576 * 1152)
        a("s_mov_b32 s38, 1152")
        a("s_mov_b32 s39, 1152")
        a(f"s_mul_i32 s40, s33, {RB}")
        a("s_mov_b32 s41, s40")
        a(f"s_mov_b32 s62, {18 // NS - 1}")
    make_srd(a, 16, 24, None, WS_SIZE)
    PERH = NWI // NH
    NTOT = NXI + NWI
    NSLOT = (NTOT + NWAVE - 1) // NWAVE
    assert NSLOT <= 5
    SRD0, SOFF0, SSTR0, SM00 = 64, 84, 89, 94
    MAGIC, MSH = (0xaab, 15) if CH == 12 else (0xe39, 16)
    for e in range(NSLOT):
        sd = SRD0 + 4 * e
        vo = 32 + e
        a(f"s_add_u32 s47, s36, {e * NWAVE}")
        a(f"s_mov_b32 s{SOFF0 + e}, 0")
        a(f"s_cmp_lt_u32 s47, {NXI}")
        a(f"s_cbranch_scc0 L_{name}_w{e}")
        for q in range(4):
            a(f"s_mov_b32 s{sd + q}, s{4 + q}")
        a(f"s_mov_b32 s{SSTR0 + e}, 64")
        a(f"s_lshl_b32 s{SM00 + e}, s47, 10")
        a("v_lshrrev_b32 v1, 2, v0")
        a("s_lshl_b32 s48, s47, 4")
        a("s_add_u32 s48, s48, s37")
        a("v_add_u32 v1, s48, v1")
        a(f"v_mul_lo_u32 v{vo}, v1, s38")
        a("v_and_b32 v2, 3, v0")
        a("v_lshrrev_b32 v3, 5, v0")
        a("v_lshlrev_b32 v3, 1, v3")
        a("v_xor_b32 v2, v2, v3")
        a(f"v_lshl_add_u32 v{vo}, v2, 4, v{vo}")
        a(f"s_branch L_{name}_d{e}")
        a.label(f"L_{name}_w{e}")
        a(f"s_cmp_lt_u32 s47, {NTOT}")
        a(f"s_cbranch_scc0 L_{name}_z{e}")
        a(f"s_sub_u32 s47, s47, {NXI}")
        a(f"s_lshl_b32 s{SM00 + e}, s47, 10")
        a(f"s_add_u32 s{SM00 + e}, s{SM00 + e}, {XB}")
        a(f"s_lshl_b32 s{SSTR0 + e}, s39, 5")
        a(f"s_sub_u32 s48, s47, {PERH}")
        a(f"s_cmp_lt_u32 s47, {PERH}")
        for q in range(4):
            a(f"s_cselect_b32 s{sd + q}, s{8 + q}, s{12 + q}")
        a("s_cselect_b32 s46, s40, s41")
        a("s_cselect_b32 s47, s47, s48")
        a("s_lshl_b32 s47, s47, 6")
        a("v_add_u32 v1, s47, v0")
        a(f"v_mul_u32_u24 v2, {MAGIC}, v1")
        a(f"v_lshrrev_b32 v2, {MSH}, v2")
        a(f"v_mul_u32_u24 v3, {CH}, v2")
        a("v_sub_u32 v3, v1, v3")
        a("v_bfe_u32 v4, v2, 3, 1")
        if CH == 12:
            a("v_lshlrev_b32 v4, 1, v4")
            a("v_xor_b32 v3, v3, v4")
        else:
            a("v_lshlrev_b32 v4, 3, v4")
            a("v_xor_b32 v4, v3, v4")
            a("v_cmp_gt_u32 vcc, 16, v3")
            a("s_nop 1")
            a("v_cndmask_b32 v3, v3, v4, vcc")
        a("v_mul_lo_u32 v2, v2, s39")
        if kind == "qh":
            a("v_lshrrev_b32 v4, 2, v3")
            a("v_mul_u32_u24 v4, 1152, v4")
            a("v_and_b32 v3, 3, v3")
            a("v_add_u32 v2, v2, v4")
        a("v_lshl_add_u32 v2, v3, 4, v2")
        a(f"v_add_u32 v{vo}, s46, v2")
        a(f"s_branch L_{name}_d{e}")
        a.label(f"L_{name}_z{e}")
        a(f"s_mov_b32 s{sd}, s4")
        a(f"s_mov_b32 s{sd + 1}, s5")
        a(f"s_mov_b32 s{sd + 2}, 0")
        a(f"s_mov_b32 s{sd + 3}, 0x20000")
        a(f"s_mov_b32 s{SSTR0 + e}, 0")
        a(f"s_mov_b32 s{SM00 + e}, {LDS_DUMMY}")
        assert LDS_DUMMY + (NS - 1) * STAGE + 1024 <= 262144, (kind, NS, STAGE)
        a(f"v_mov_b32 v{vo}, 0")
        a.label(f"L_{name}_d{e}")
    a(f"s_and_b32 s49, s36, {NWM - 1}")
    a(f"s_lshr_b32 s50, s36, {NWM.bit_length() - 1}")
    a("v_and_b32 v1, 15, v0")
    a(f"s_lshl_b32 s47, s49, {WSH}")
    a("v_add_u32 v1, s47, v1")
    a("v_lshlrev_b32 v1, 6, v1")
    a("v_lshrrev_b32 v2, 4, v0")
    a("v_bfe_u32 v3, v0, 3, 1")
    a("v_lshlrev_b32 v3, 1, v3")
    a("v_xor_b32 v2, v2, v3")
    a("v_lshl_add_u32 v7, v2, 4, v1")
    a("v_lshrrev_b32 v1, 4, v0")
    a("v_bfe_u32 v2, v0, 2, 2")
    a("v_lshl_add_u32 v2, v1, 3, v2")
    a(f"v_mul_u32_u24 v2, {RB}, v2")
    a("v_and_b32 v3, 1, v0")
    a("v_lshl_add_u32 v2, v3, 3, v2")
    a(f"v_add_u32 v2, {XB}, v2")
    a("v_and_b32 v1, 1, v1")
    a(f"v_lshlrev_b32 v1, {1 if CH == 12 else 3}, v1")
    a("v_bfe_u32 v3, v0, 1, 1")
    a(f"s_mul_i32 s47, s50, {2 * NJH}")
    a("v_add_u32 v3, s47, v3")
    for j in range(NJH):
        a(f"v_add_u32 v4, {2 * j}, v3")
        a("v_xor_b32 v8, v4, v1")
        if CH != 12:
            a("v_cmp_gt_u32 vcc, 16, v4")
            a("s_nop 1")
            a("v_cndmask_b32 v8, v4, v8, vcc")
        a(f"v_lshl_add_u32 v{60 + j}, v8, 4, v2")
    ACC = 72
    XF = 40
    WF = 8
    WPW = NSLOT
    for j in range(NJH):
        a(f"v_add_u32 v{56 + j}, {2 * STAGE}, v{60 + j}")
    a(f"v_add_u32 v63, {2 * STAGE}, v7")
    if NS > 4:
        for j in range(NJH):
            a(f"v_add_u32 v{160 + j}, {4 * STAGE}, v{60 + j}")
        a(f"v_add_u32 v163, {4 * STAGE}, v7")

    def issue_dma(slot):
        buf = slot * STAGE
        for e in range(NSLOT):
            a(f"s_add_u32 m0, s{SM00 + e}, {buf}")
            a("s_nop 0")
            a(f"buffer_load_dwordx4 v{32 + e}, {sr(SRD0 + 4 * e, 4)}, s{SOFF0 + e} offen lds")
            a(f"s_add_u32 s{SOFF0 + e}, s{SOFF0 + e}, s{SSTR0 + e}")

    for q in range(NS - KU):
        issue_dma(q)
    for i in range(NJ * MI * 4):
        a(f"v_mov_b32 v{ACC + i}, 0")

    def rd_x(slot, i):
        buf = (slot % 2) * STAGE
        xa = ["v7", "v63", "v163"][slot // 2]
        a(f"ds_read_b128 {vr(XF + 4 * i, 4)}, {xa} offset:{buf + i * 1024}")

    def rd_w(slot, j):
        buf = (slot % 2) * STAGE
        wb = [60, 56, 160][slot // 2]
        off = buf + (j // NJH) * WBYTES
        a(f"ds_read_b64_tr_b16 {vr(WF + 4 * j, 2)}, v{wb + j % NJH} offset:{off}")
        a(f"ds_read_b64_tr_b16 {vr(WF + 4 * j + 2, 2)}, v{wb + j % NJH} offset:{off + 4 * RB}")

    def stage(slot, swapped, wait, prefetch, nxt, sync=True):
        nslot = (slot + 1) % NS
        if sync:
            if wait is not None:
                a(f"s_waitcnt vmcnt({wait})")
                a("s_barrier")
            if prefetch:
                for u in range(KU):
                    issue_dma((slot + NS - KU + u) % NS)
        for j in range(NJ):
            for i in range(MI):
                if j == 0:
                    a(f"s_waitcnt lgkmcnt({MI + 1 - i})")
                elif j == NJ - 1 and i == 0:
                    a(f"s_waitcnt lgkmcnt({2 * (NJ - 1) if nxt else 0})")
                d = vr(ACC + (j * MI + i) * 4, 4)
                if swapped:
                    a(f"v_mfma_f32_16x16x32_bf16 {d}, {vr(WF + 4 * j, 4)}, {vr(XF + 4 * i, 4)}, {d}")
                else:
                    a(f"v_mfma_f32_16x16x32_bf16 {d}, {vr(XF + 4 * i, 4)}, {vr(WF + 4 * j, 4)}, {d}")
                if j == NJ - 1 and nxt:
                    rd_x(nslot, i)
            if nxt:
                rd_w(nslot, j)

    def mainloop(swapped, tag):
        W1 = KU * WPW
        a(f"s_waitcnt vmcnt({(NSS - 2) * W1})")
        a("s_barrier")
        for j in range(NJ - 1):
            rd_w(0, j)
        for i in range(MI):
            rd_x(0, i)
        rd_w(0, NJ - 1)
        a.label(f"L_{name}_loop{tag}")
        for slot in range(NS):
            stage(slot, swapped, (NSS - 3) * W1, True, True, slot % KU == 0)
        a("s_sub_u32 s62, s62, 1")
        a("s_cmp_lg_u32 s62, 0")
        a(f"s_cbranch_scc1 L_{name}_loop{tag}")
        ntail = NS + (18 % NS if kind != "fin" else 0)
        nsup = ntail // KU
        for t in range(ntail):
            S = t // KU
            rem = nsup - 1 - S
            wait = max(0, min(NSS - 3, rem - 1)) * W1 if rem >= 1 else None
            stage(t % NS, swapped, wait, rem >= NSS - 1, t < ntail - 1, t % KU == 0)
        a("s_nop 7")
        a("s_nop 1")

    def acc(j, i, r):
        return ACC + (j * MI + i) * 4 + r

    if kind == "qh":
        a("s_cmp_eq_u32 s50, 2")
        a(f"s_cbranch_scc1 L_{name}_vpath")
        mainloop(True, "a")
        a("v_and_b32 v1, 15, v0")
        a(f"s_lshl_b32 s47, s49, {WSH}")
        a("s_add_u32 s47, s47, s37")
        a("v_add_u32 v1, s47, v1")
        a("s_cmp_eq_u32 s50, 0")
        a(f"s_cselect_b32 s63, 0x{fbits(QSCALE):08x}, 1.0")
        a("s_lshl_b32 s56, s50, 21")
        a("s_lshl_b32 s57, s33, 16")
        a("s_add_u32 s56, s56, s57")
        a("v_lshlrev_b32 v2, 4, v1")
        a("v_lshrrev_b32 v3, 5, v0")
        a("v_lshl_add_u32 v2, v3, 15, v2")
        a("v_bfe_u32 v3, v0, 4, 1")
        a("v_lshl_add_u32 v2, v3, 3, v2")
        a("s_lshl_b32 s57, s50, 18")
        a("s_lshl_b32 s58, s33, 13")
        a("s_add_u32 s57, s57, s58")
        a(f"s_add_u32 s57, s57, {Q2_OFF}")
        a("v_lshlrev_b32 v3, 2, v1")
        for i in range(MI):
            for r in range(4):
                a(f"v_mul_f32 v{acc(0, i, r)}, s63, v{acc(0, i, r)}")
            a(f"v_mul_f32 v{acc(1, i, 0)}, s63, v{acc(1, i, 0)}")
            a(f"v_mul_f32 v{acc(1, i, 1)}, s63, v{acc(1, i, 1)}")
            a(f"v_cvt_pk_bf16_f32 v{8 + 4 * i}, v{acc(0, i, 0)}, v{acc(0, i, 1)}")
            a(f"v_cvt_pk_bf16_f32 v{9 + 4 * i}, v{acc(0, i, 2)}, v{acc(0, i, 3)}")
            a(f"v_cvt_pk_bf16_f32 v{10 + 4 * i}, v{acc(1, i, 0)}, v{acc(1, i, 1)}")
        for i in range(MI):
            a(f"buffer_store_dwordx2 {vr(8 + 4 * i, 2)}, v2, s[16:19], s56 offen offset:{256 * i}")
        a("v_cmp_gt_u32 vcc, 16, v0")
        a("s_and_saveexec_b64 s[58:59], vcc")
        for i in range(MI):
            a(f"buffer_store_dword v{10 + 4 * i}, v3, s[16:19], s57 offen offset:{64 * i}")
        a("s_mov_b64 exec, s[58:59]")
        a(f"s_branch L_{name}_done")
        a.label(f"L_{name}_vpath")
        mainloop(False, "b")
        a("v_bfe_u32 v1, v0, 4, 1")
        a("v_lshlrev_b32 v1, 3, v1")
        a("v_bfe_u32 v2, v0, 5, 1")
        a("v_lshl_add_u32 v1, v2, 2, v1")
        a(f"s_lshl_b32 s47, s49, {WSH}")
        a("s_add_u32 s47, s47, s37")
        a("v_add_u32 v1, s47, v1")
        a("v_lshlrev_b32 v1, 1, v1")
        a("v_and_b32 v2, 15, v0")
        a("v_lshl_add_u32 v1, v2, 12, v1")
        a("s_mul_i32 s56, s33, 73728")
        a(f"s_add_u32 s56, s56, {VT_OFF}")
        a("s_add_u32 s57, s56, 65536")
        for j in range(2):
            for i in range(MI):
                a(f"v_cvt_pk_bf16_f32 v{8 + 8 * j + 2 * i}, v{acc(j, i, 0)}, v{acc(j, i, 1)}")
                a(f"v_cvt_pk_bf16_f32 v{9 + 8 * j + 2 * i}, v{acc(j, i, 2)}, v{acc(j, i, 3)}")
        for i in range(MI):
            a(f"buffer_store_dwordx2 {vr(8 + 2 * i, 2)}, v1, s[16:19], s56 offen offset:{32 * i}")
        a("v_cmp_gt_u32 vcc, 2, v2")
        a("s_and_saveexec_b64 s[58:59], vcc")
        for i in range(MI):
            a(f"buffer_store_dwordx2 {vr(16 + 2 * i, 2)}, v1, s[16:19], s57 offen offset:{32 * i}")
        a("s_mov_b64 exec, s[58:59]")
        a.label(f"L_{name}_done")
    elif kind == "glu":
        mainloop(True, "a")
        PIT = HW * 2 + 16
        a("s_barrier")
        a("v_and_b32 v1, 15, v0")
        a(f"s_lshl_b32 s47, s49, {WSH}")
        a("v_add_u32 v1, s47, v1")
        a(f"v_mul_u32_u24 v1, {PIT}, v1")
        a("v_lshrrev_b32 v2, 4, v0")
        a("v_lshl_add_u32 v1, v2, 3, v1")
        a("s_mul_i32 s56, s50, 96")
        a("v_add_u32 v1, s56, v1")
        a("s_mov_b32 s57, 0xffff0000")
        for i in range(MI):
            for jj in range(3):
                t = 8 + (jj & 1) * 16
                a(f"v_cvt_pk_bf16_f32 v{t}, v{acc(jj, i, 0)}, v{acc(jj, i, 1)}")
                a(f"v_cvt_pk_bf16_f32 v{t + 1}, v{acc(jj, i, 2)}, v{acc(jj, i, 3)}")
                a(f"v_cvt_pk_bf16_f32 v{t + 2}, v{acc(jj + 3, i, 0)}, v{acc(jj + 3, i, 1)}")
                a(f"v_cvt_pk_bf16_f32 v{t + 3}, v{acc(jj + 3, i, 2)}, v{acc(jj + 3, i, 3)}")
                a(f"v_lshlrev_b32 v{t + 4}, 16, v{t}")
                a(f"v_and_b32 v{t + 5}, s57, v{t}")
                a(f"v_lshlrev_b32 v{t + 6}, 16, v{t + 1}")
                a(f"v_and_b32 v{t + 7}, s57, v{t + 1}")
                a(f"v_lshlrev_b32 v{t + 8}, 16, v{t + 2}")
                a(f"v_and_b32 v{t + 9}, s57, v{t + 2}")
                a(f"v_lshlrev_b32 v{t + 10}, 16, v{t + 3}")
                a(f"v_and_b32 v{t + 11}, s57, v{t + 3}")
                for r in range(4):
                    a(f"v_mul_f32 v{t + 4 + r}, v{t + 4 + r}, v{t + 8 + r}")
                a(f"v_cvt_pk_bf16_f32 v{t + 12}, v{t + 4}, v{t + 5}")
                a(f"v_cvt_pk_bf16_f32 v{t + 13}, v{t + 6}, v{t + 7}")
                a(f"ds_write_b64 v1, {vr(t + 12, 2)} offset:{i * 16 * PIT + jj * 32}")
        a("s_waitcnt lgkmcnt(0)")
        a("s_barrier")
        NT = 64 * NWAVE
        NQ = BM * CH // NT
        a("s_lshl_b32 s47, s36, 6")
        a("v_add_u32 v1, s47, v0")
        a(f"s_add_u32 s56, s40, {H_OFF}")
        a("s_mul_i32 s57, s37, 9216")
        a("s_add_u32 s56, s56, s57")
        a("s_mov_b32 s57, 9216")
        a("s_mov_b32 s58, 0x38e38e39")
        for q in range(NQ):
            a(f"v_add_u32 v2, {q * NT}, v1")
            a("v_mul_hi_u32 v3, v2, s58")
            a("v_lshrrev_b32 v3, 2, v3")
            a(f"v_mul_u32_u24 v4, {CH}, v3")
            a("v_sub_u32 v4, v2, v4")
            a(f"v_mul_u32_u24 v5, {PIT}, v3")
            a("v_lshl_add_u32 v5, v4, 4, v5")
            a(f"ds_read_b128 {vr(72 + 4 * q, 4)}, v5")
            a("v_mul_lo_u32 v3, v3, s57")
            a(f"v_lshl_add_u32 v{40 + q}, v4, 4, v3")
        for q in range(NQ):
            a(f"s_waitcnt lgkmcnt({NQ - 1 - q})")
            a(f"buffer_store_dwordx4 {vr(72 + 4 * q, 4)}, v{40 + q}, s[16:19], s56 offen")
    else:
        mainloop(True, "a")
        a("v_and_b32 v1, 15, v0")
        a(f"s_lshl_b32 s47, s49, {WSH}")
        a("s_add_u32 s47, s47, s37")
        a("v_add_u32 v1, s47, v1")
        a("v_mul_u32_u24 v1, 2304, v1")
        a("v_lshrrev_b32 v2, 4, v0")
        a("v_lshl_add_u32 v1, v2, 4, v1")
        a("s_mul_i32 s56, s50, 192")
        a("s_lshl_b32 s57, s40, 1")
        a("s_add_u32 s56, s56, s57")
        a(f"s_mul_i32 s57, s34, {P_STRIDE}")
        a("s_add_u32 s56, s56, s57")
        a(f"s_add_u32 s56, s56, {P_OFF}")
        a("v_add_u32 v1, s56, v1")
        for i in range(MI):
            a(f"s_mov_b32 s58, {i * 16 * 2304}")
            for j in range(NJ):
                a(f"buffer_store_dwordx4 {vr(acc(j, i, 0), 4)}, v1, s[16:19], s58 offen offset:{(j // NJH) * HW * 4 + (j % NJH) * 64}")


LDS_DUMMY = 143360


def wave_setup(a):
    a("v_lshrrev_b32 v1, 6, v0")
    a("v_and_b32 v0, 63, v0")
    a("s_nop 0")
    a("v_readfirstlane_b32 s36, v1")


def gen_k1(a, name):
    kernel_begin(a, name)
    a("s_cmp_ge_u32 s2, 256")
    a(f"s_cbranch_scc1 L_{name}_end")
    a(f"s_load_dwordx4 s[24:27], s[0:1], {ARG_X}")
    a(f"s_load_dwordx4 s[28:31], s[0:1], {ARG_WG}")
    a("v_lshlrev_b32 v1, 4, v0")
    a("s_mul_i32 s33, s2, 12288")
    a("s_waitcnt lgkmcnt(0)")
    make_srd(a, 4, 24, None, 2048 * 1152)
    make_srd(a, 8, 26, None, 576 * 3456)
    make_srd(a, 12, 28, None, 576 * 9216)
    make_srd(a, 16, 30, None, 576 * 9216)
    a("buffer_load_dwordx4 v[64:67], v1, s[4:7], s33 offen")
    a("buffer_load_dwordx4 v[68:71], v1, s[8:11], s33 offen")
    a("buffer_load_dwordx4 v[64:67], v1, s[12:15], s33 offen")
    a("buffer_load_dwordx4 v[68:71], v1, s[16:19], s33 offen")
    a(f"s_add_u32 s33, s33, {256 * 12288}")
    a("buffer_load_dwordx4 v[64:67], v1, s[12:15], s33 offen")
    a("buffer_load_dwordx4 v[68:71], v1, s[16:19], s33 offen")
    a(f"s_load_dwordx2 s[24:25], s[0:1], {ARG_WD}")
    a(f"s_load_dwordx2 s[26:27], s[0:1], {ARG_WO}")
    a("s_waitcnt lgkmcnt(0)")
    make_srd(a, 4, 24, None, 4608 * 1152)
    make_srd(a, 8, 26, None, 576 * 1152)
    a("buffer_load_dwordx4 v[64:67], v1, s[4:7], s33 offen")
    a("s_mul_i32 s33, s2, 12288")
    a("buffer_load_dwordx4 v[68:71], v1, s[4:7], s33 offen")
    a("buffer_load_dwordx4 v[64:67], v1, s[8:11], s33 offen")
    wave_setup(a)
    if 'noqh' not in ABL:
        gemm_phase(a, name, "qh")
    a("s_barrier")
    if 'noglu' not in ABL:
        gemm_phase(a, name, "glu")
    a.label(f"L_{name}_end")
    a("s_endpgm")
    kernel_desc(a, name, 168, 102)


B_V = 16384
B_VSTR = 1040
B_K2 = B_V + 19 * B_VSTR
B_BUF = B_K2 + 2048
K2_LDS = 81920


def attn_role(a, name):
    a(f"s_load_dwordx2 s[24:25], s[0:1], {ARG_WS}")
    a("s_and_b32 s32, s2, 31")
    a("s_lshr_b32 s33, s2, 5")
    a("v_lshlrev_b32 v1, 4, v0")
    a("s_waitcnt lgkmcnt(0)")
    make_srd(a, 4, 24, None, WS_SIZE)
    GO, GI, LO = 40, 46, 52
    for e in range(5):
        a(f"s_add_u32 s60, s36, {8 * e}")
        if e < 2:
            a("s_lshl_b32 s61, s32, 16")
            a(f"s_add_u32 s61, s61, {K16_OFF + e * 32768}")
            a("s_lshl_b32 s62, s36, 10")
            a(f"s_add_u32 s{GO + e}, s61, s62")
            a(f"s_mov_b32 s{GI + e}, 8192")
            a(f"s_add_u32 s{LO + e}, s62, {e * 8192}")
        elif e < 4:
            a("s_sub_u32 s60, s60, 16")
            a("s_mul_i32 s61, s32, 73728")
            a(f"s_add_u32 s61, s61, {VT_OFF}")
            a("s_lshl_b32 s62, s60, 12")
            a(f"s_add_u32 s{GO + e}, s61, s62")
            a(f"s_mov_b32 s{GI + e}, 1024")
            a(f"s_mul_i32 s{LO + e}, s60, {B_VSTR}")
            a(f"s_add_u32 s{LO + e}, s{LO + e}, {B_V}")
        else:
            a("s_mul_i32 s61, s32, 73728")
            a(f"s_add_u32 s61, s61, {VT_OFF + 16 * 4096}")
            a("s_lshl_b32 s62, s36, 12")
            a("s_add_u32 s61, s61, s62")
            a(f"s_mul_i32 s63, s36, {B_VSTR}")
            a(f"s_add_u32 s63, s63, {B_V + 16 * B_VSTR}")
            a("s_lshl_b32 s64, s32, 13")
            a(f"s_add_u32 s64, s64, {K2_OFF - 2048}")
            a("s_lshl_b32 s62, s36, 10")
            a("s_add_u32 s64, s64, s62")
            a(f"s_add_u32 s65, s62, {B_K2 - 2048}")
            a("s_cmp_lt_u32 s36, 2")
            a(f"s_cselect_b32 s{GO + e}, s61, s64")
            a(f"s_cselect_b32 s{LO + e}, s63, s65")
            a(f"s_cselect_b32 s{GI + e}, 1024, 2048") if False else None
            a("s_mov_b32 s66, 1024")
            a(f"s_cselect_b32 s{GI + e}, s66, 2048")
            a("s_cmp_lt_u32 s36, 4")
            a(f"s_cselect_b32 s{LO + e}, s{LO + e}, {K2_LDS + 2048}")

    def issue_chunk(buf_sgpr):
        for e in range(5):
            a(f"s_add_u32 m0, s{LO + e}, {buf_sgpr}")
            a("s_nop 0")
            a(f"buffer_load_dwordx4 v1, s[4:7], s{GO + e} offen lds")
            a(f"s_add_u32 s{GO + e}, s{GO + e}, s{GI + e}")

    issue_chunk("0")
    issue_chunk(str(B_BUF))
    a("v_mov_b32 v2, 0x3f803f80")
    a("v_mov_b32 v3, 0x3f803f80")
    a("s_and_b32 s60, s36, 1")
    a("s_lshl_b32 s60, s60, 9")
    a("s_lshr_b32 s61, s36, 1")
    a("s_and_b32 s61, s61, 1")
    a(f"s_mul_i32 s61, s61, {B_BUF}")
    a("s_add_u32 s60, s60, s61")
    a("v_lshlrev_b32 v4, 3, v0")
    a("v_add_u32 v4, s60, v4")
    a(f"v_add_u32 v4, {B_V + 18 * B_VSTR}, v4")
    a("ds_write_b64 v4, v[2:3]")
    QF1, QF2 = 8, 12
    a("v_and_b32 v2, 31, v0")
    a("s_lshl_b32 s60, s33, 8")
    a("s_lshl_b32 s61, s36, 5")
    a("s_add_u32 s60, s60, s61")
    a("v_add_u32 v2, s60, v2")
    a("v_lshrrev_b32 v3, 5, v0")
    a("v_lshlrev_b32 v4, 4, v2")
    a("v_lshl_add_u32 v4, v3, 15, v4")
    a("s_lshl_b32 s60, s32, 16")
    a(f"s_add_u32 s60, s60, {Q16_OFF}")
    a(f"buffer_load_dwordx4 {vr(QF1, 4)}, v4, s[4:7], s60 offen")
    a("v_lshlrev_b32 v4, 2, v2")
    a("s_lshl_b32 s60, s32, 13")
    a(f"s_add_u32 s60, s60, {Q2_OFF}")
    a(f"buffer_load_dword v{QF2}, v4, s[4:7], s60 offen")
    for r in range(1, 4):
        a(f"v_mov_b32 v{QF2 + r}, 0")
    a("v_and_b32 v4, 31, v0")
    a("v_lshlrev_b32 v5, 4, v4")
    a("v_lshl_add_u32 v5, v3, 13, v5")
    a("v_lshlrev_b32 v6, 2, v4")
    a(f"v_add_u32 v6, {B_K2}, v6")
    a("v_min_u32 v7, 18, v4")
    a(f"v_mul_u32_u24 v7, {B_VSTR}, v7")
    a("v_lshl_add_u32 v7, v3, 4, v7")
    a(f"v_add_u32 v7, {B_V}, v7")
    a(f"v_add_u32 v120, {B_BUF}, v5")
    a(f"v_add_u32 v121, {B_BUF}, v6")
    a(f"v_add_u32 v122, {B_BUF}, v7")
    KF, K2F, VF = 16, 20, 24
    SA, SB = 32, 48
    PF = 64
    OA = 72
    NEGM = 88
    VT1, VT2, VAL = 104, 105, 106
    for r in range(1, 4):
        a(f"v_mov_b32 v{K2F + r}, 0")
    for r in range(16):
        a(f"v_mov_b32 v{OA + r}, 0")
    for r in range(8):
        a(f"v_mov_b32 v{PF + r}, 0")
    a("s_waitcnt vmcnt(5) lgkmcnt(0)")
    a("s_waitcnt vmcnt(0)")
    a("v_cmp_gt_u32 vcc, 32, v0")
    a("s_nop 1")
    a(f"v_cndmask_b32 v{QF2}, 0, v{QF2}, vcc")
    a("s_barrier")

    def read_K(t):
        ka, k2a = ("v5", "v6") if t < 16 else ("v120", "v121")
        tt = t % 16
        a(f"ds_read_b128 {vr(KF, 4)}, {ka} offset:{tt * 512}")
        a(f"ds_read_b32 v{K2F}, {k2a} offset:{tt * 128}")

    def read_V(t):
        for b in range(2):
            a(f"ds_read_b128 {vr(VF + 4 * b, 4)}, v7 offset:{t * 64 + b * 32}")

    def tile_max_ops(S):
        mx = [f"v_max3_f32 v{VT1}, v{S}, v{S + 1}, v{S + 2}"]
        for k in range(6):
            mx.append(f"v_max3_f32 v{VT1}, v{S + 3 + 2 * k}, v{S + 4 + 2 * k}, v{VT1}")
        mx.append(f"v_max_f32 v{VT1}, v{S + 15}, v{VT1}")
        return mx

    def cross_half_max():
        a(f"v_mov_b32 v{VT2}, v{VT1}")
        a("s_nop 1")
        a(f"v_permlane32_swap_b32 v{VT1}, v{VT2}")
        a("s_nop 1")
        a(f"v_max_f32 v{VT1}, v{VT1}, v{VT2}")

    def pv_mfma(b):
        d = vr(OA, 16)
        return f"v_mfma_f32_32x32x16_bf16 {d}, {vr(VF + 4 * b, 4)}, {vr(PF + 4 * b, 4)}, {d}"

    def qk_mfma(S, n, c=None):
        d = vr(S, 16)
        if n:
            return f"v_mfma_f32_32x32x16_bf16 {d}, {vr(K2F, 4)}, {vr(QF2, 4)}, {d}"
        return f"v_mfma_f32_32x32x16_bf16 {d}, {vr(KF, 4)}, {vr(QF1, 4)}, {c if c else vr(NEGM, 16)}"

    rare = []

    def iteration(t):
        S, Sn = (SA, SB) if t % 2 == 0 else (SB, SA)
        mx = tile_max_ops(S)
        a("s_waitcnt lgkmcnt(2)")
        for k in range(8):
            if k % 4 == 0:
                a(pv_mfma(k // 4))
            a(mx[k])
        read_V(t)
        a(f"v_cmp_lt_f32 vcc, 0x41000000, v{VT1}")
        a(f"s_cbranch_vccnz L_{name}_rs{t}")
        a.label(f"L_{name}_ct{t}")
        rare.append((S, t))
        a("s_waitcnt lgkmcnt(2)")
        for k in range(16):
            if k % 8 == 0:
                a(qk_mfma(Sn, k // 8))
            a(f"v_exp_f32 v{S + k}, v{S + k}")
        read_K(t + 2)
        for k in range(8):
            a(f"v_cvt_pk_bf16_f32 v{PF + k}, v{S + 2 * k}, v{S + 2 * k + 1}")

    read_K(0)
    a("s_waitcnt lgkmcnt(0)")
    a(qk_mfma(SA, 0, "0"))
    a(qk_mfma(SA, 1))
    read_V(0)
    read_K(1)
    a("s_nop 15")
    for op in tile_max_ops(SA):
        a(op)
    cross_half_max()
    for k in range(16):
        a(f"v_sub_f32 v{SA + k}, v{SA + k}, v{VT1}")
    for r in range(16):
        a(f"v_sub_f32 v{NEGM + r}, 0, v{VT1}")
    a("s_mov_b32 s58, 0")
    a("s_mov_b32 s59, 0")
    a.label(f"L_{name}_loop")
    for t in range(16):
        iteration(t)
        if t == 1:
            a("s_barrier")
            a("s_cmp_eq_u32 s58, 0")
            a(f"s_cbranch_scc1 L_{name}_nf")
            a("s_cmp_eq_u32 s58, 3")
            a(f"s_cbranch_scc1 L_{name}_nf")
            issue_chunk("s59")
            a.label(f"L_{name}_nf")
        if t == 13:
            a("s_waitcnt vmcnt(0)")
            a("s_barrier")
    for (x, y) in (("v5", "v120"), ("v6", "v121"), ("v7", "v122")):
        a(f"v_swap_b32 {x}, {y}")
    a("s_and_b32 s59, s58, 1")
    a(f"s_mul_i32 s59, s59, {B_BUF}")
    a("s_add_u32 s58, s58, 1")
    a("s_cmp_lt_u32 s58, 4")
    a(f"s_cbranch_scc1 L_{name}_loop")
    a("s_waitcnt lgkmcnt(0)")
    a("s_nop 0")
    a(pv_mfma(0))
    a(pv_mfma(1))
    a(f"s_branch L_{name}_fin")
    for (S, t) in rare:
        a.label(f"L_{name}_rs{t}")
        a("s_nop 15")
        cross_half_max()
        a(f"v_max_f32 v{VT1}, 0, v{VT1}")
        a(f"v_sub_f32 v{VAL}, 0, v{VT1}")
        a(f"v_exp_f32 v{VAL}, v{VAL}")
        for k in range(16):
            a(f"v_sub_f32 v{S + k}, v{S + k}, v{VT1}")
        for r in range(16):
            a(f"v_sub_f32 v{NEGM + r}, v{NEGM + r}, v{VT1}")
        for r in range(12):
            a(f"v_mul_f32 v{OA + r}, v{OA + r}, v{VAL}")
        a("s_nop 1")
        a(f"s_branch L_{name}_ct{t}")
    a.label(f"L_{name}_fin")
    a("s_nop 15")
    a("s_nop 7")
    a(f"v_mov_b32 v{VT1}, v{OA + 10}")
    a(f"v_mov_b32 v{VT2}, v{OA + 10}")
    a("s_nop 1")
    a(f"v_permlane32_swap_b32 v{VT1}, v{VT2}")
    a("s_nop 1")
    a(f"v_rcp_f32 v{VT1}, v{VT1}")
    a("s_nop 0")
    for r in range(12):
        a(f"v_mul_f32 v{OA + r}, v{OA + r}, v{VT1}")
    for k in range(6):
        a(f"v_cvt_pk_bf16_f32 v{PF + k}, v{OA + 2 * k}, v{OA + 2 * k + 1}")
    a("v_mul_u32_u24 v4, 1152, v2")
    a("v_lshl_add_u32 v4, v3, 3, v4")
    a("s_mul_i32 s60, s32, 36")
    a(f"s_add_u32 s60, s60, {O_OFF}")
    a(f"buffer_store_dword v{PF}, v4, s[4:7], s60 offen")
    a(f"buffer_store_dword v{PF + 1}, v4, s[4:7], s60 offen offset:4")
    a(f"buffer_store_dword v{PF + 2}, v4, s[4:7], s60 offen offset:16")
    a(f"buffer_store_dword v{PF + 3}, v4, s[4:7], s60 offen offset:20")
    a("v_cmp_gt_u32 vcc, 32, v0")
    a("s_and_saveexec_b64 s[44:45], vcc")
    a(f"buffer_store_dword v{PF + 4}, v4, s[4:7], s60 offen offset:32")
    a("s_endpgm")


def gen_k2(a, name):
    kernel_begin(a, name)
    a(f"s_cmp_ge_u32 s2, {256 + 192}")
    a(f"s_cbranch_scc1 L_{name}_end")
    wave_setup(a)
    a("s_cmp_lt_u32 s2, 256")
    a(f"s_cbranch_scc0 L_{name}_gemm")
    attn_role(a, name)
    a.label(f"L_{name}_gemm")
    gemm_phase(a, name, "fin")
    a.label(f"L_{name}_end")
    a("s_endpgm")
    kernel_desc(a, name, 128, 102)


def gen_k3(a, name):
    kernel_begin(a, name)
    a("s_cmp_ge_u32 s2, 192")
    a(f"s_cbranch_scc1 L_{name}_end")
    wave_setup(a)
    gemm_phase(a, name, "wo")
    a.label(f"L_{name}_end")
    a("s_endpgm")
    kernel_desc(a, name, 104, 102)


def gen_reduce(a, name):
    kernel_begin(a, name)
    a("s_cmp_ge_u32 s2, 512")
    a(f"s_cbranch_scc1 L_{name}_end")
    a(f"s_load_dwordx2 s[24:25], s[0:1], {ARG_WS}")
    a(f"s_load_dwordx2 s[26:27], s[0:1], {ARG_X}")
    a(f"s_load_dwordx2 s[28:29], s[0:1], {ARG_GW}")
    a(f"s_load_dwordx2 s[30:31], s[0:1], {ARG_OUT}")
    a("v_lshrrev_b32 v1, 6, v0")
    a("v_and_b32 v0, 63, v0")
    a("s_nop 0")
    a("v_readfirstlane_b32 s36, v1")
    a("s_lshl_b32 s37, s2, 2")
    a("s_add_u32 s37, s37, s36")
    a("s_waitcnt lgkmcnt(0)")
    make_srd(a, 4, 24, None, WS_SIZE)
    make_srd(a, 8, 26, None, 2048 * 1152)
    make_srd(a, 12, 28, None, 1152)
    make_srd(a, 16, 30, None, 2048 * 1152)
    a("v_lshlrev_b32 v1, 3, v0")
    a("v_lshlrev_b32 v2, 4, v0")
    a("s_mul_i32 s38, s37, 1152")
    a("s_mul_i32 s39, s37, 2304")
    a("s_mov_b32 s57, 0xffff0000")
    a("v_cmp_gt_u32 s[40:41], 16, v0")
    for c in range(3):
        if c == 2:
            a("s_mov_b64 s[42:43], exec")
            a("s_mov_b64 exec, s[40:41]")
        a(f"buffer_load_dwordx2 {vr(4 + 2 * c, 2)}, v1, s[8:11], s38 offen offset:{512 * c}")
        a(f"buffer_load_dwordx2 {vr(10 + 2 * c, 2)}, v1, s[12:15], 0 offen offset:{512 * c}")
        if c == 2:
            a("s_mov_b64 exec, s[42:43]")
    for c in range(3):
        if c == 2:
            a("s_mov_b64 exec, s[40:41]")
        for sp in range(5):
            a(f"s_add_u32 s44, s39, {P_OFF + sp * P_STRIDE}")
            a(f"buffer_load_dwordx4 {vr(32 + (c * 5 + sp) * 4, 4)}, v2, s[4:7], s44 offen offset:{1024 * c}")
        if c == 2:
            a("s_mov_b64 exec, s[42:43]")
    a("v_mov_b32 v16, 0")
    a("s_waitcnt vmcnt(15)")
    for c in range(3):
        if c == 2:
            a("s_mov_b64 exec, s[40:41]")
        for h in range(2):
            xr, gr = 4 + 2 * c + h, 10 + 2 * c + h
            a(f"v_lshlrev_b32 v17, 16, v{xr}")
            a(f"v_and_b32 v18, s57, v{xr}")
            a(f"v_lshlrev_b32 v19, 16, v{gr}")
            a(f"v_and_b32 v20, s57, v{gr}")
            a("v_mul_f32 v17, v17, v19")
            a("v_mul_f32 v18, v18, v20")
            a("v_cvt_pk_bf16_f32 v17, v17, v18")
            a("v_lshlrev_b32 v18, 16, v17")
            a("v_and_b32 v17, s57, v17")
            a("v_add_f32 v16, v16, v18")
            a("v_add_f32 v16, v16, v17")
        if c == 2:
            a("s_mov_b64 exec, s[42:43]")
    for m in (1, 2, 4, 8, 16):
        a(f"ds_swizzle_b32 v17, v16 offset:0x{(m << 10) | 0x1f:04x}")
        a("s_waitcnt lgkmcnt(0)")
        a("v_add_f32 v16, v16, v17")
    a("v_mov_b32 v17, v16")
    a("s_nop 1")
    a("v_permlane32_swap_b32 v16, v17")
    a("s_nop 1")
    a("v_add_f32 v16, v16, v17")
    a("v_cvt_pk_bf16_f32 v16, v16, v16")
    a("v_and_b32 v16, s57, v16")
    a("v_mul_f32 v16, 0xbfb8aa3b, v16")
    a("v_exp_f32 v16, v16")
    a("s_nop 0")
    a("v_add_f32 v16, 1.0, v16")
    a("v_rcp_f32 v16, v16")
    a("s_nop 0")
    a("v_cvt_pk_bf16_f32 v16, v16, v16")
    a("v_and_b32 v16, s57, v16")
    a("v_sub_f32 v17, 1.0, v16")
    a("v_cvt_pk_bf16_f32 v17, v17, v17")
    a("v_and_b32 v17, s57, v17")
    a("s_waitcnt vmcnt(0)")
    for c in range(3):
        for r in range(4):
            b0 = 32 + (c * 5) * 4 + r
            a(f"v_add_f32 v{b0}, v{b0}, v{b0 + 4}")
            a(f"v_add_f32 v{b0 + 8}, v{b0 + 8}, v{b0 + 12}")
            a(f"v_add_f32 v{b0}, v{b0}, v{b0 + 8}")
            a(f"v_cvt_pk_bf16_f32 v18, v{b0}, v{b0 + 16}")
            a("v_lshlrev_b32 v19, 16, v18")
            a("v_and_b32 v18, s57, v18")
            a("v_mul_f32 v18, v18, v16")
            a("v_mul_f32 v19, v19, v17")
            a("v_cvt_pk_bf16_f32 v18, v18, v19")
            a("v_lshlrev_b32 v19, 16, v18")
            a("v_and_b32 v18, s57, v18")
            a(f"v_add_f32 v{b0}, v18, v19")
        b0 = 32 + (c * 5) * 4
        a(f"v_cvt_pk_bf16_f32 v{20 + 2 * c}, v{b0}, v{b0 + 1}")
        a(f"v_cvt_pk_bf16_f32 v{21 + 2 * c}, v{b0 + 2}, v{b0 + 3}")
    for c in range(3):
        if c == 2:
            a("s_mov_b64 exec, s[40:41]")
        a(f"buffer_store_dwordx2 {vr(20 + 2 * c, 2)}, v1, s[16:19], s38 offen offset:{512 * c}")
    a.label(f"L_{name}_end")
    a("s_endpgm")
    kernel_desc(a, name, 96)


def main():
    hdr = open("cdna_kernels/" + KNAME + ".s.ref").read().split("\n")
    out = []
    for ln in hdr:
        if ln.startswith("; @launch"):
            break
        out.append(ln)
    k_k1 = "gm_k1_kernel"
    k_k2 = "gm_k2_kernel"
    k_k3 = "gm_k3_kernel"
    k_red = KNAME + "_kernel"
    out.append(f"; @launch kernel={k_k1} grid=(256,1,1) block=(768,1,1) lds={gemm_lds('glu')}")
    out.append(f"; @launch kernel={k_k2} grid=(448,1,1) block=(512,1,1) lds={K2_LDS}")
    out.append(f"; @launch kernel={k_k3} grid=(192,1,1) block=(256,1,1) lds={gemm_lds('wo')}")
    out.append(f"; @launch kernel={k_red} grid=(512,1,1) block=(256,1,1) lds=0")
    out.append('.amdgcn_target "amdgcn-amd-amdhsa--gfx950"')
    a = Asm()
    gen_k1(a, k_k1)
    gen_k2(a, k_k2)
    gen_k3(a, k_k3)
    gen_reduce(a, k_red)
    txt = "\n".join(out) + "\n" + a.text()
    dst = sys.argv[1] if len(sys.argv) > 1 else "cdna_kernels/" + KNAME + ".s"
    open(dst, "w").write(txt)
    print("wrote", dst, len(txt))


if __name__ == "__main__":
    main()
```

```python
import math
import sys
import os
ABL = os.environ.get('ABL', '')

KNAME = "gated_mix__mha_block__glu_gated_bilinear__prompt"

Q16_OFF = 0x000000
K16_OFF = 0x200000
Q2_OFF = 0x400000
K2_OFF = 0x440000
VT_OFF = 0x480000
O_OFF = 0x700000
H_OFF = 0x1000000
G_OFF = 0x6E0000
P_OFF = 0x3000000
WS_SIZE = 0x10000000
P_STRIDE = 2048 * 576 * 4

ARG_X, ARG_WQKV, ARG_WO, ARG_BX, ARG_WG, ARG_WU, ARG_WD, ARG_GW, ARG_OUT, ARG_DBG, ARG_WS = [8 * i for i in range(11)]


class Asm:
    def __init__(self):
        self.lines = []

    def __call__(self, s):
        self.lines.append("    " + s)

    def label(self, s):
        self.lines.append(s + ":")

    def raw(self, s):
        self.lines.append(s)

    def text(self):
        return "\n".join(self.lines) + "\n"


def vr(b, n):
    return f"v[{b}:{b + n - 1}]"


def sr(b, n):
    return f"s[{b}:{b + n - 1}]"


def kernel_begin(a, name):
    a.raw(".text")
    a.raw(f".globl {name}")
    a.raw(".p2align 8")
    a.raw(f".type {name},@function")
    a.label(name)


def kernel_desc(a, name, nvgpr, nsgpr=96):
    a.raw('.section .rodata,"a"')
    a.raw(".p2align 6")
    a.raw(f".amdhsa_kernel {name}")
    a.raw(f"  .amdhsa_next_free_vgpr {nvgpr}")
    a.raw(f"  .amdhsa_next_free_sgpr {nsgpr}")
    a.raw(f"  .amdhsa_accum_offset {((nvgpr + 3) // 4) * 4}")
    a.raw("  .amdhsa_group_segment_fixed_size 0")
    a.raw("  .amdhsa_kernarg_size 88")
    a.raw("  .amdhsa_user_sgpr_count 2")
    a.raw("  .amdhsa_user_sgpr_kernarg_segment_ptr 1")
    a.raw("  .amdhsa_system_sgpr_workgroup_id_x 1")
    a.raw(".end_amdhsa_kernel")


def make_srd(a, d, base_pair, off_sgpr_or_imm, nrec):
    lo, hi = base_pair, base_pair + 1
    if off_sgpr_or_imm is None:
        a(f"s_mov_b32 s{d}, s{lo}")
        a(f"s_and_b32 s{d + 1}, s{hi}, 0xffff")
    else:
        a(f"s_add_u32 s{d}, s{lo}, {off_sgpr_or_imm}")
        a(f"s_addc_u32 s{d + 1}, s{hi}, 0")
        a(f"s_and_b32 s{d + 1}, s{d + 1}, 0xffff")
    a(f"s_mov_b32 s{d + 2}, {nrec}")
    a(f"s_mov_b32 s{d + 3}, 0x20000")


QSCALE = math.log2(math.e) / math.sqrt(18.0)
import struct


def fbits(x):
    return struct.unpack("<I", struct.pack("<f", x))[0]


GEMM_CFG = {
    "qh": dict(NWN=3, NH=1, NJH=2, NWM=4, MI=4, NS=6, KU=2),
    "glu": dict(NWN=3, NH=2, NJH=3, NWM=4, MI=4, NS=4, KU=1),
    "fin": dict(NWN=2, NH=2, NJH=3, NWM=4, MI=2, NS=4, KU=1),
    "wo": dict(NWN=2, NH=1, NJH=3, NWM=2, MI=2, NS=4, KU=1),
}


def gemm_lds(kind):
    c = GEMM_CFG[kind]
    return c["NS"] * (c["NWM"] * c["MI"] * 1024 + c["NH"] * 32 * 32 * c["NJH"] * c["NWN"])


def gemm_phase(a, name, kind):
    c = GEMM_CFG[kind]
    NWN, NH, NJH, NWM, MI, NS = c["NWN"], c["NH"], c["NJH"], c["NWM"], c["MI"], c["NS"]
    KU = c["KU"]
    NSS = NS // KU
    name = name + "_" + kind
    NWAVE = NWM * NWN
    WSH = (16 * MI).bit_length() - 1
    BM = 16 * MI * NWM
    XB = BM * 64
    NXI = BM // 16
    HW = 16 * NJH * NWN
    RB = 2 * HW
    CH = RB // 16
    WBYTES = 32 * RB
    STAGE = XB + NH * WBYTES
    NWI = NH * WBYTES // 1024
    NJ = NJH * NH
    a(f"s_load_dwordx2 s[24:25], s[0:1], {ARG_WS}")
    a(f"s_load_dwordx2 s[26:27], s[0:1], {ARG_X}")
    if kind == "qh":
        a(f"s_load_dwordx2 s[28:29], s[0:1], {ARG_WQKV}")
    elif kind == "glu":
        a(f"s_load_dwordx2 s[28:29], s[0:1], {ARG_WG}")
        a(f"s_load_dwordx2 s[30:31], s[0:1], {ARG_WU}")
    elif kind == "fin":
        a(f"s_load_dwordx2 s[28:29], s[0:1], {ARG_WD}")
    else:
        a(f"s_load_dwordx2 s[28:29], s[0:1], {ARG_WO}")
    if kind in ("glu", "qh"):
        a("s_and_b32 s33, s2, 7")
        a("s_lshl_b32 s33, s33, 2")
        a("s_lshr_b32 s34, s2, 3")
        a("s_and_b32 s32, s34, 7")
        a("s_lshr_b32 s34, s34, 3")
        a("s_add_u32 s33, s33, s34")
    elif kind == "fin":
        a("s_sub_u32 s35, s2, 256")
        a("s_and_b32 s32, s35, 15")
        a("s_lshr_b32 s33, s35, 4")
        a("s_mul_i32 s34, s33, 0x5556")
        a("s_lshr_b32 s34, s34, 16")
        a("s_mul_i32 s35, s34, 3")
        a("s_sub_u32 s33, s33, s35")
    else:
        a("s_and_b32 s32, s2, 31")
        a("s_lshr_b32 s33, s2, 5")
        a("s_mov_b32 s34, 4")
    a(f"s_mul_i32 s37, s32, {BM}")
    a("s_waitcnt lgkmcnt(0)")
    if kind == "qh":
        make_srd(a, 4, 26, None, 2048 * 1152)
        make_srd(a, 8, 28, None, 576 * 3456)
        make_srd(a, 12, 28, None, 576 * 3456)
        a("s_mov_b32 s38, 1152")
        a("s_mov_b32 s39, 3456")
        a("s_mul_i32 s40, s33, 36")
        a("s_mov_b32 s41, s40")
        a(f"s_mov_b32 s62, {18 // NS - 1}")
    elif kind == "glu":
        make_srd(a, 4, 26, None, 2048 * 1152)
        make_srd(a, 8, 28, None, 576 * 9216)
        make_srd(a, 12, 30, None, 576 * 9216)
        a("s_mov_b32 s38, 1152")
        a("s_mov_b32 s39, 9216")
        a(f"s_mul_i32 s40, s33, {RB}")
        a("s_mov_b32 s41, s40")
        a(f"s_mov_b32 s62, {18 // NS - 1}")
    elif kind == "fin":
        a("s_mul_i32 s42, s34, 2304")
        a(f"s_add_u32 s42, s42, {H_OFF}")
        a(f"s_mul_i32 s60, s34, {1152 * 1152}")
        a(f"s_sub_u32 s61, {4608 * 1152}, s60")
        a(f"s_sub_u32 s43, {WS_SIZE}, s42")
        make_srd(a, 4, 24, "s42", "s43")
        make_srd(a, 8, 28, "s60", "s61")
        make_srd(a, 12, 28, "s60", "s61")
        a("s_movk_i32 s38, 9216")
        a("s_mov_b32 s39, 1152")
        a(f"s_mul_i32 s40, s33, {NH * RB}")
        a(f"s_add_u32 s41, s40, {RB}")
        a(f"s_mov_b32 s62, {36 // NS - 1}")
    else:
        make_srd(a, 4, 24, f"{O_OFF}", 2048 * 1152)
        make_srd(a, 8, 28, None, 576 * 1152)
        make_srd(a, 12, 28, None, 576 * 1152)
        a("s_mov_b32 s38, 1152")
        a("s_mov_b32 s39, 1152")
        a(f"s_mul_i32 s40, s33, {RB}")
        a("s_mov_b32 s41, s40")
        a(f"s_mov_b32 s62, {18 // NS - 1}")
    make_srd(a, 16, 24, None, WS_SIZE)
    PERH = NWI // NH
    NTOT = NXI + NWI
    NSLOT = (NTOT + NWAVE - 1) // NWAVE
    assert NSLOT <= 5
    SRD0, SOFF0, SSTR0, SM00 = 64, 84, 89, 94
    MAGIC, MSH = (0xaab, 15) if CH == 12 else (0xe39, 16)
    for e in range(NSLOT):
        sd = SRD0 + 4 * e
        vo = 32 + e
        a(f"s_add_u32 s47, s36, {e * NWAVE}")
        a(f"s_mov_b32 s{SOFF0 + e}, 0")
        a(f"s_cmp_lt_u32 s47, {NXI}")
        a(f"s_cbranch_scc0 L_{name}_w{e}")
        for q in range(4):
            a(f"s_mov_b32 s{sd + q}, s{4 + q}")
        a(f"s_mov_b32 s{SSTR0 + e}, 64")
        a(f"s_lshl_b32 s{SM00 + e}, s47, 10")
        a("v_lshrrev_b32 v1, 2, v0")
        a("s_lshl_b32 s48, s47, 4")
        a("s_add_u32 s48, s48, s37")
        a("v_add_u32 v1, s48, v1")
        a(f"v_mul_lo_u32 v{vo}, v1, s38")
        a("v_and_b32 v2, 3, v0")
        a("v_lshrrev_b32 v3, 5, v0")
        a("v_lshlrev_b32 v3, 1, v3")
        a("v_xor_b32 v2, v2, v3")
        a(f"v_lshl_add_u32 v{vo}, v2, 4, v{vo}")
        a(f"s_branch L_{name}_d{e}")
        a.label(f"L_{name}_w{e}")
        a(f"s_cmp_lt_u32 s47, {NTOT}")
        a(f"s_cbranch_scc0 L_{name}_z{e}")
        a(f"s_sub_u32 s47, s47, {NXI}")
        a(f"s_lshl_b32 s{SM00 + e}, s47, 10")
        a(f"s_add_u32 s{SM00 + e}, s{SM00 + e}, {XB}")
        a(f"s_lshl_b32 s{SSTR0 + e}, s39, 5")
        a(f"s_sub_u32 s48, s47, {PERH}")
        a(f"s_cmp_lt_u32 s47, {PERH}")
        for q in range(4):
            a(f"s_cselect_b32 s{sd + q}, s{8 + q}, s{12 + q}")
        a("s_cselect_b32 s46, s40, s41")
        a("s_cselect_b32 s47, s47, s48")
        a("s_lshl_b32 s47, s47, 6")
        a("v_add_u32 v1, s47, v0")
        a(f"v_mul_u32_u24 v2, {MAGIC}, v1")
        a(f"v_lshrrev_b32 v2, {MSH}, v2")
        a(f"v_mul_u32_u24 v3, {CH}, v2")
        a("v_sub_u32 v3, v1, v3")
        a("v_bfe_u32 v4, v2, 3, 1")
        if CH == 12:
            a("v_lshlrev_b32 v4, 1, v4")
            a("v_xor_b32 v3, v3, v4")
        else:
            a("v_lshlrev_b32 v4, 3, v4")
            a("v_xor_b32 v4, v3, v4")
            a("v_cmp_gt_u32 vcc, 16, v3")
            a("s_nop 1")
            a("v_cndmask_b32 v3, v3, v4, vcc")
        a("v_mul_lo_u32 v2, v2, s39")
        if kind == "qh":
            a("v_lshrrev_b32 v4, 2, v3")
            a("v_mul_u32_u24 v4, 1152, v4")
            a("v_and_b32 v3, 3, v3")
            a("v_add_u32 v2, v2, v4")
        a("v_lshl_add_u32 v2, v3, 4, v2")
        a(f"v_add_u32 v{vo}, s46, v2")
        a(f"s_branch L_{name}_d{e}")
        a.label(f"L_{name}_z{e}")
        a(f"s_mov_b32 s{sd}, s4")
        a(f"s_mov_b32 s{sd + 1}, s5")
        a(f"s_mov_b32 s{sd + 2}, 0")
        a(f"s_mov_b32 s{sd + 3}, 0x20000")
        a(f"s_mov_b32 s{SSTR0 + e}, 0")
        a(f"s_mov_b32 s{SM00 + e}, {LDS_DUMMY}")
        assert LDS_DUMMY + (NS - 1) * STAGE + 1024 <= 262144, (kind, NS, STAGE)
        a(f"v_mov_b32 v{vo}, 0")
        a.label(f"L_{name}_d{e}")
    a(f"s_and_b32 s49, s36, {NWM - 1}")
    a(f"s_lshr_b32 s50, s36, {NWM.bit_length() - 1}")
    a("v_and_b32 v1, 15, v0")
    a(f"s_lshl_b32 s47, s49, {WSH}")
    a("v_add_u32 v1, s47, v1")
    a("v_lshlrev_b32 v1, 6, v1")
    a("v_lshrrev_b32 v2, 4, v0")
    a("v_bfe_u32 v3, v0, 3, 1")
    a("v_lshlrev_b32 v3, 1, v3")
    a("v_xor_b32 v2, v2, v3")
    a("v_lshl_add_u32 v7, v2, 4, v1")
    a("v_lshrrev_b32 v1, 4, v0")
    a("v_bfe_u32 v2, v0, 2, 2")
    a("v_lshl_add_u32 v2, v1, 3, v2")
    a(f"v_mul_u32_u24 v2, {RB}, v2")
    a("v_and_b32 v3, 1, v0")
    a("v_lshl_add_u32 v2, v3, 3, v2")
    a(f"v_add_u32 v2, {XB}, v2")
    a("v_and_b32 v1, 1, v1")
    a(f"v_lshlrev_b32 v1, {1 if CH == 12 else 3}, v1")
    a("v_bfe_u32 v3, v0, 1, 1")
    a(f"s_mul_i32 s47, s50, {2 * NJH}")
    a("v_add_u32 v3, s47, v3")
    for j in range(NJH):
        a(f"v_add_u32 v4, {2 * j}, v3")
        a("v_xor_b32 v8, v4, v1")
        if CH != 12:
            a("v_cmp_gt_u32 vcc, 16, v4")
            a("s_nop 1")
            a("v_cndmask_b32 v8, v4, v8, vcc")
        a(f"v_lshl_add_u32 v{60 + j}, v8, 4, v2")
    ACC = 72
    XF = 40
    WF = 8
    WPW = NSLOT
    for j in range(NJH):
        a(f"v_add_u32 v{56 + j}, {2 * STAGE}, v{60 + j}")
    a(f"v_add_u32 v63, {2 * STAGE}, v7")
    if NS > 4:
        for j in range(NJH):
            a(f"v_add_u32 v{160 + j}, {4 * STAGE}, v{60 + j}")
        a(f"v_add_u32 v163, {4 * STAGE}, v7")

    def issue_dma(slot):
        buf = slot * STAGE
        for e in range(NSLOT):
            a(f"s_add_u32 m0, s{SM00 + e}, {buf}")
            a("s_nop 0")
            a(f"buffer_load_dwordx4 v{32 + e}, {sr(SRD0 + 4 * e, 4)}, s{SOFF0 + e} offen lds")
            a(f"s_add_u32 s{SOFF0 + e}, s{SOFF0 + e}, s{SSTR0 + e}")

    for q in range(NS - KU):
        issue_dma(q)
    for i in range(NJ * MI * 4):
        a(f"v_mov_b32 v{ACC + i}, 0")

    def rd_x(slot, i):
        buf = (slot % 2) * STAGE
        xa = ["v7", "v63", "v163"][slot // 2]
        a(f"ds_read_b128 {vr(XF + 4 * i, 4)}, {xa} offset:{buf + i * 1024}")

    def rd_w(slot, j):
        buf = (slot % 2) * STAGE
        wb = [60, 56, 160][slot // 2]
        off = buf + (j // NJH) * WBYTES
        a(f"ds_read_b64_tr_b16 {vr(WF + 4 * j, 2)}, v{wb + j % NJH} offset:{off}")
        a(f"ds_read_b64_tr_b16 {vr(WF + 4 * j + 2, 2)}, v{wb + j % NJH} offset:{off + 4 * RB}")

    def stage(slot, swapped, wait, prefetch, nxt, sync=True):
        nslot = (slot + 1) % NS
        if sync:
            if wait is not None:
                a(f"s_waitcnt vmcnt({wait})")
                a("s_barrier")
            if prefetch:
                for u in range(KU):
                    issue_dma((slot + NS - KU + u) % NS)
        for j in range(NJ):
            for i in range(MI):
                if j == 0:
                    a(f"s_waitcnt lgkmcnt({MI + 1 - i})")
                elif j == NJ - 1 and i == 0:
                    a(f"s_waitcnt lgkmcnt({2 * (NJ - 1) if nxt else 0})")
                d = vr(ACC + (j * MI + i) * 4, 4)
                if swapped:
                    a(f"v_mfma_f32_16x16x32_bf16 {d}, {vr(WF + 4 * j, 4)}, {vr(XF + 4 * i, 4)}, {d}")
                else:
                    a(f"v_mfma_f32_16x16x32_bf16 {d}, {vr(XF + 4 * i, 4)}, {vr(WF + 4 * j, 4)}, {d}")
                if j == NJ - 1 and nxt:
                    rd_x(nslot, i)
            if nxt:
                rd_w(nslot, j)

    def mainloop(swapped, tag):
        W1 = KU * WPW
        a(f"s_waitcnt vmcnt({(NSS - 2) * W1})")
        a("s_barrier")
        for j in range(NJ - 1):
            rd_w(0, j)
        for i in range(MI):
            rd_x(0, i)
        rd_w(0, NJ - 1)
        a.label(f"L_{name}_loop{tag}")
        for slot in range(NS):
            stage(slot, swapped, (NSS - 3) * W1, True, True, slot % KU == 0)
        a("s_sub_u32 s62, s62, 1")
        a("s_cmp_lg_u32 s62, 0")
        a(f"s_cbranch_scc1 L_{name}_loop{tag}")
        ntail = NS + (18 % NS if kind != "fin" else 0)
        nsup = ntail // KU
        for t in range(ntail):
            S = t // KU
            rem = nsup - 1 - S
            wait = max(0, min(NSS - 3, rem - 1)) * W1 if rem >= 1 else None
            stage(t % NS, swapped, wait, rem >= NSS - 1, t < ntail - 1, t % KU == 0)
        a("s_nop 7")
        a("s_nop 1")

    def acc(j, i, r):
        return ACC + (j * MI + i) * 4 + r

    if kind == "qh":
        a("s_cmp_eq_u32 s50, 2")
        a(f"s_cbranch_scc1 L_{name}_vpath")
        mainloop(True, "a")
        a("v_and_b32 v1, 15, v0")
        a(f"s_lshl_b32 s47, s49, {WSH}")
        a("s_add_u32 s47, s47, s37")
        a("v_add_u32 v1, s47, v1")
        a("s_cmp_eq_u32 s50, 0")
        a(f"s_cselect_b32 s63, 0x{fbits(QSCALE):08x}, 1.0")
        a("s_lshl_b32 s56, s50, 21")
        a("s_lshl_b32 s57, s33, 16")
        a("s_add_u32 s56, s56, s57")
        a("v_lshlrev_b32 v2, 4, v1")
        a("v_lshrrev_b32 v3, 5, v0")
        a("v_lshl_add_u32 v2, v3, 15, v2")
        a("v_bfe_u32 v3, v0, 4, 1")
        a("v_lshl_add_u32 v2, v3, 3, v2")
        a("s_lshl_b32 s57, s50, 18")
        a("s_lshl_b32 s58, s33, 13")
        a("s_add_u32 s57, s57, s58")
        a(f"s_add_u32 s57, s57, {Q2_OFF}")
        a("v_lshlrev_b32 v3, 2, v1")
        for i in range(MI):
            for r in range(4):
                a(f"v_mul_f32 v{acc(0, i, r)}, s63, v{acc(0, i, r)}")
            a(f"v_mul_f32 v{acc(1, i, 0)}, s63, v{acc(1, i, 0)}")
            a(f"v_mul_f32 v{acc(1, i, 1)}, s63, v{acc(1, i, 1)}")
            a(f"v_cvt_pk_bf16_f32 v{8 + 4 * i}, v{acc(0, i, 0)}, v{acc(0, i, 1)}")
            a(f"v_cvt_pk_bf16_f32 v{9 + 4 * i}, v{acc(0, i, 2)}, v{acc(0, i, 3)}")
            a(f"v_cvt_pk_bf16_f32 v{10 + 4 * i}, v{acc(1, i, 0)}, v{acc(1, i, 1)}")
        for i in range(MI):
            a(f"buffer_store_dwordx2 {vr(8 + 4 * i, 2)}, v2, s[16:19], s56 offen offset:{256 * i}")
        a("v_cmp_gt_u32 vcc, 16, v0")
        a("s_and_saveexec_b64 s[58:59], vcc")
        for i in range(MI):
            a(f"buffer_store_dword v{10 + 4 * i}, v3, s[16:19], s57 offen offset:{64 * i}")
        a("s_mov_b64 exec, s[58:59]")
        a(f"s_branch L_{name}_done")
        a.label(f"L_{name}_vpath")
        mainloop(False, "b")
        a("v_bfe_u32 v1, v0, 4, 1")
        a("v_lshlrev_b32 v1, 3, v1")
        a("v_bfe_u32 v2, v0, 5, 1")
        a("v_lshl_add_u32 v1, v2, 2, v1")
        a(f"s_lshl_b32 s47, s49, {WSH}")
        a("s_add_u32 s47, s47, s37")
        a("v_add_u32 v1, s47, v1")
        a("v_lshlrev_b32 v1, 1, v1")
        a("v_and_b32 v2, 15, v0")
        a("v_lshl_add_u32 v1, v2, 12, v1")
        a("s_mul_i32 s56, s33, 73728")
        a(f"s_add_u32 s56, s56, {VT_OFF}")
        a("s_add_u32 s57, s56, 65536")
        for j in range(2):
            for i in range(MI):
                a(f"v_cvt_pk_bf16_f32 v{8 + 8 * j + 2 * i}, v{acc(j, i, 0)}, v{acc(j, i, 1)}")
                a(f"v_cvt_pk_bf16_f32 v{9 + 8 * j + 2 * i}, v{acc(j, i, 2)}, v{acc(j, i, 3)}")
        for i in range(MI):
            a(f"buffer_store_dwordx2 {vr(8 + 2 * i, 2)}, v1, s[16:19], s56 offen offset:{32 * i}")
        a("v_cmp_gt_u32 vcc, 2, v2")
        a("s_and_saveexec_b64 s[58:59], vcc")
        for i in range(MI):
            a(f"buffer_store_dwordx2 {vr(16 + 2 * i, 2)}, v1, s[16:19], s57 offen offset:{32 * i}")
        a("s_mov_b64 exec, s[58:59]")
        a.label(f"L_{name}_done")
    elif kind == "glu":
        mainloop(True, "a")
        PIT = HW * 2 + 16
        a("s_barrier")
        a("v_and_b32 v1, 15, v0")
        a(f"s_lshl_b32 s47, s49, {WSH}")
        a("v_add_u32 v1, s47, v1")
        a(f"v_mul_u32_u24 v1, {PIT}, v1")
        a("v_lshrrev_b32 v2, 4, v0")
        a("v_lshl_add_u32 v1, v2, 3, v1")
        a("s_mul_i32 s56, s50, 96")
        a("v_add_u32 v1, s56, v1")
        a("s_mov_b32 s57, 0xffff0000")
        for i in range(MI):
            for jj in range(3):
                t = 8 + (jj & 1) * 16
                a(f"v_cvt_pk_bf16_f32 v{t}, v{acc(jj, i, 0)}, v{acc(jj, i, 1)}")
                a(f"v_cvt_pk_bf16_f32 v{t + 1}, v{acc(jj, i, 2)}, v{acc(jj, i, 3)}")
                a(f"v_cvt_pk_bf16_f32 v{t + 2}, v{acc(jj + 3, i, 0)}, v{acc(jj + 3, i, 1)}")
                a(f"v_cvt_pk_bf16_f32 v{t + 3}, v{acc(jj + 3, i, 2)}, v{acc(jj + 3, i, 3)}")
                a(f"v_lshlrev_b32 v{t + 4}, 16, v{t}")
                a(f"v_and_b32 v{t + 5}, s57, v{t}")
                a(f"v_lshlrev_b32 v{t + 6}, 16, v{t + 1}")
                a(f"v_and_b32 v{t + 7}, s57, v{t + 1}")
                a(f"v_lshlrev_b32 v{t + 8}, 16, v{t + 2}")
                a(f"v_and_b32 v{t + 9}, s57, v{t + 2}")
                a(f"v_lshlrev_b32 v{t + 10}, 16, v{t + 3}")
                a(f"v_and_b32 v{t + 11}, s57, v{t + 3}")
                for r in range(4):
                    a(f"v_mul_f32 v{t + 4 + r}, v{t + 4 + r}, v{t + 8 + r}")
                a(f"v_cvt_pk_bf16_f32 v{t + 12}, v{t + 4}, v{t + 5}")
                a(f"v_cvt_pk_bf16_f32 v{t + 13}, v{t + 6}, v{t + 7}")
                a(f"ds_write_b64 v1, {vr(t + 12, 2)} offset:{i * 16 * PIT + jj * 32}")
        a("s_waitcnt lgkmcnt(0)")
        a("s_barrier")
        NT = 64 * NWAVE
        NQ = BM * CH // NT
        a("s_lshl_b32 s47, s36, 6")
        a("v_add_u32 v1, s47, v0")
        a(f"s_add_u32 s56, s40, {H_OFF}")
        a("s_mul_i32 s57, s37, 9216")
        a("s_add_u32 s56, s56, s57")
        a("s_mov_b32 s57, 9216")
        a("s_mov_b32 s58, 0x38e38e39")
        for q in range(NQ):
            a(f"v_add_u32 v2, {q * NT}, v1")
            a("v_mul_hi_u32 v3, v2, s58")
            a("v_lshrrev_b32 v3, 2, v3")
            a(f"v_mul_u32_u24 v4, {CH}, v3")
            a("v_sub_u32 v4, v2, v4")
            a(f"v_mul_u32_u24 v5, {PIT}, v3")
            a("v_lshl_add_u32 v5, v4, 4, v5")
            a(f"ds_read_b128 {vr(72 + 4 * q, 4)}, v5")
            a("v_mul_lo_u32 v3, v3, s57")
            a(f"v_lshl_add_u32 v{40 + q}, v4, 4, v3")
        for q in range(NQ):
            a(f"s_waitcnt lgkmcnt({NQ - 1 - q})")
            a(f"buffer_store_dwordx4 {vr(72 + 4 * q, 4)}, v{40 + q}, s[16:19], s56 offen")
    elif kind == "fin":
        mainloop(True, "a")
        a("v_and_b32 v1, 15, v0")
        a(f"s_lshl_b32 s47, s49, {WSH}")
        a("s_add_u32 s47, s47, s37")
        a("v_add_u32 v1, s47, v1")
        a("v_mul_u32_u24 v1, 2304, v1")
        a("v_lshrrev_b32 v2, 4, v0")
        a("v_lshl_add_u32 v1, v2, 4, v1")
        a("s_mul_i32 s56, s50, 192")
        a("s_lshl_b32 s57, s40, 1")
        a("s_add_u32 s56, s56, s57")
        a(f"s_mul_i32 s57, s34, {P_STRIDE}")
        a("s_add_u32 s56, s56, s57")
        a(f"s_add_u32 s56, s56, {P_OFF}")
        a("v_add_u32 v1, s56, v1")
        for i in range(MI):
            a(f"s_mov_b32 s58, {i * 16 * 2304}")
            for j in range(NJ):
                a(f"buffer_store_dwordx4 {vr(acc(j, i, 0), 4)}, v1, s[16:19], s58 offen offset:{(j // NJH) * HW * 4 + (j % NJH) * 64}")


    else:
        a(f"s_load_dwordx2 s[30:31], s[0:1], {ARG_OUT}")
        a("v_and_b32 v1, 15, v0")
        a(f"s_lshl_b32 s47, s49, {WSH}")
        a("s_add_u32 s47, s47, s37")
        a("v_add_u32 v1, s47, v1")
        a("v_lshlrev_b32 v5, 3, v1")
        for i in range(MI):
            a(f"buffer_load_dwordx2 {vr(100 + 2 * i, 2)}, v5, s[16:19], 0 offen offset:{128 * i}") if False else None
        a(f"s_mov_b32 s56, {G_OFF}")
        for i in range(MI):
            a(f"buffer_load_dwordx2 {vr(100 + 2 * i, 2)}, v5, s[16:19], s56 offen offset:{128 * i}")
        mainloop(True, "a")
        a("v_mul_u32_u24 v2, 2304, v1")
        a("v_lshrrev_b32 v3, 4, v0")
        a("v_lshl_add_u32 v2, v3, 4, v2")
        a("v_mul_u32_u24 v4, 1152, v1")
        a("v_lshl_add_u32 v4, v3, 3, v4")
        a("s_mul_i32 s56, s50, 192")
        a("s_lshl_b32 s57, s40, 1")
        a("s_add_u32 s56, s56, s57")
        a("s_lshr_b32 s59, s56, 1")
        a(f"s_add_u32 s56, s56, {P_OFF}")
        a("s_waitcnt lgkmcnt(0)")
        make_srd(a, 20, 30, None, 2048 * 1152)
        a("s_mov_b32 s57, 0xffff0000")
        PB = 104
        for i in range(MI):
            for j in range(NJ):
                for sp in range(4):
                    a(f"s_add_u32 s58, s56, {sp * P_STRIDE + i * 16 * 2304}")
                    a(f"buffer_load_dwordx4 {vr(PB + ((j * 4) + sp) * 4, 4)}, v2, s[16:19], s58 offen offset:{j * 64}")
            a("s_waitcnt vmcnt(0)")
            for j in range(NJ):
                for r in range(4):
                    b0 = PB + j * 16 + r
                    a(f"v_add_f32 v{b0}, v{b0}, v{b0 + 4}")
                    a(f"v_add_f32 v{b0 + 8}, v{b0 + 8}, v{b0 + 12}")
                    a(f"v_add_f32 v{b0}, v{b0}, v{b0 + 8}")
                    a(f"v_cvt_pk_bf16_f32 v8, v{b0}, v{acc(j, i, r)}")
                    a("v_lshlrev_b32 v9, 16, v8")
                    a("v_and_b32 v8, s57, v8")
                    a(f"v_mul_f32 v8, v8, v{100 + 2 * i}")
                    a(f"v_mul_f32 v9, v9, v{101 + 2 * i}")
                    a("v_cvt_pk_bf16_f32 v8, v8, v9")
                    a("v_lshlrev_b32 v9, 16, v8")
                    a("v_and_b32 v8, s57, v8")
                    a(f"v_add_f32 v{b0}, v8, v9")
                b0 = PB + j * 16
                a(f"v_cvt_pk_bf16_f32 v{10 + 2 * j}, v{b0}, v{b0 + 1}")
                a(f"v_cvt_pk_bf16_f32 v{11 + 2 * j}, v{b0 + 2}, v{b0 + 3}")
            a(f"s_add_u32 s58, s59, {i * 16 * 1152}")
            for j in range(NJ):
                a(f"buffer_store_dwordx2 {vr(10 + 2 * j, 2)}, v4, s[20:23], s58 offen offset:{j * 32}")
            a("s_nop 1")


LDS_DUMMY = 143360


def wave_setup(a):
    a("v_lshrrev_b32 v1, 6, v0")
    a("v_and_b32 v0, 63, v0")
    a("s_nop 0")
    a("v_readfirstlane_b32 s36, v1")


def gate_code(a, name):
    a("s_cmp_ge_u32 s36, 8")
    a(f"s_cbranch_scc1 L_{name}_ng")
    a(f"s_load_dwordx2 s[24:25], s[0:1], {ARG_WS}")
    a(f"s_load_dwordx2 s[26:27], s[0:1], {ARG_X}")
    a(f"s_load_dwordx2 s[28:29], s[0:1], {ARG_GW}")
    a("s_lshl_b32 s37, s2, 3")
    a("s_add_u32 s37, s37, s36")
    a("s_waitcnt lgkmcnt(0)")
    make_srd(a, 4, 24, None, WS_SIZE)
    make_srd(a, 8, 26, None, 2048 * 1152)
    make_srd(a, 12, 28, None, 1152)
    a("v_lshlrev_b32 v1, 3, v0")
    a("s_mul_i32 s38, s37, 1152")
    a("s_mov_b32 s57, 0xffff0000")
    a("v_cmp_gt_u32 s[40:41], 16, v0")
    for c in range(3):
        if c == 2:
            a("s_mov_b64 s[42:43], exec")
            a("s_mov_b64 exec, s[40:41]")
        a(f"buffer_load_dwordx2 {vr(4 + 2 * c, 2)}, v1, s[8:11], s38 offen offset:{512 * c}")
        a(f"buffer_load_dwordx2 {vr(10 + 2 * c, 2)}, v1, s[12:15], 0 offen offset:{512 * c}")
        if c == 2:
            a("s_mov_b64 exec, s[42:43]")
    a("v_mov_b32 v16, 0")
    a("s_waitcnt vmcnt(0)")
    for c in range(3):
        if c == 2:
            a("s_mov_b64 exec, s[40:41]")
        for h in range(2):
            xr, gr = 4 + 2 * c + h, 10 + 2 * c + h
            a(f"v_lshlrev_b32 v17, 16, v{xr}")
            a(f"v_and_b32 v18, s57, v{xr}")
            a(f"v_lshlrev_b32 v19, 16, v{gr}")
            a(f"v_and_b32 v20, s57, v{gr}")
            a("v_mul_f32 v17, v17, v19")
            a("v_mul_f32 v18, v18, v20")
            a("v_cvt_pk_bf16_f32 v17, v17, v18")
            a("v_lshlrev_b32 v18, 16, v17")
            a("v_and_b32 v17, s57, v17")
            a("v_add_f32 v16, v16, v18")
            a("v_add_f32 v16, v16, v17")
        if c == 2:
            a("s_mov_b64 exec, s[42:43]")
    for m in (1, 2, 4, 8, 16):
        a(f"ds_swizzle_b32 v17, v16 offset:0x{(m << 10) | 0x1f:04x}")
        a("s_waitcnt lgkmcnt(0)")
        a("v_add_f32 v16, v16, v17")
    a("v_mov_b32 v17, v16")
    a("s_nop 1")
    a("v_permlane32_swap_b32 v16, v17")
    a("s_nop 1")
    a("v_add_f32 v16, v16, v17")
    a("v_cvt_pk_bf16_f32 v16, v16, v16")
    a("v_and_b32 v16, s57, v16")
    a("v_mul_f32 v16, 0xbfb8aa3b, v16")
    a("v_exp_f32 v16, v16")
    a("s_nop 0")
    a("v_add_f32 v16, 1.0, v16")
    a("v_rcp_f32 v16, v16")
    a("s_nop 0")
    a("v_cvt_pk_bf16_f32 v16, v16, v16")
    a("v_and_b32 v16, s57, v16")
    a("v_sub_f32 v17, 1.0, v16")
    a("v_cvt_pk_bf16_f32 v17, v17, v17")
    a("v_and_b32 v17, s57, v17")
    a("s_lshl_b32 s38, s37, 3")
    a(f"s_add_u32 s38, s38, {G_OFF}")
    a("v_mov_b32 v1, 0")
    a("v_cmp_eq_u32 vcc, 0, v0")
    a("s_and_saveexec_b64 s[42:43], vcc")
    a("buffer_store_dwordx2 v[16:17], v1, s[4:7], s38 offen")
    a("s_mov_b64 exec, s[42:43]")
    a.label(f"L_{name}_ng")


K1_STAGE = 16384 + 2 * 9216 + 6144
K1_NS = 4
K1_LDS = K1_NS * K1_STAGE


def gen_k1(a, name):
    MI, NJ = 8, 6
    STAGE, NS = K1_STAGE, K1_NS
    XB, WG_OFF, WU_OFF, WQ_OFF = 16384, 16384, 16384 + 9216, 16384 + 18432
    kernel_begin(a, name)
    a("s_cmp_ge_u32 s2, 256")
    a(f"s_cbranch_scc1 L_{name}_end")
    a(f"s_load_dwordx4 s[24:27], s[0:1], {ARG_X}")
    a(f"s_load_dwordx4 s[28:31], s[0:1], {ARG_WG}")
    a(f"s_load_dwordx2 s[52:53], s[0:1], {ARG_WD}")
    a(f"s_load_dwordx2 s[54:55], s[0:1], {ARG_WO}")
    a(f"s_load_dwordx2 s[60:61], s[0:1], {ARG_WS}")
    a("v_lshlrev_b32 v1, 4, v0")
    a("s_lshl_b32 s33, s2, 13")
    a("s_waitcnt lgkmcnt(0)")
    make_srd(a, 4, 24, None, 2048 * 1152)
    make_srd(a, 8, 28, None, 576 * 9216)
    make_srd(a, 12, 30, None, 576 * 9216)
    make_srd(a, 20, 26, None, 576 * 3456)
    make_srd(a, 16, 60, None, WS_SIZE)
    a("buffer_load_dword v15, v1, s[4:7], s33 offen")
    a("buffer_load_dword v15, v1, s[20:23], s33 offen")
    a("buffer_load_dword v15, v1, s[8:11], s33 offen")
    a("buffer_load_dword v15, v1, s[12:15], s33 offen")
    a(f"s_add_u32 s34, s33, {256 * 8192}")
    a("buffer_load_dword v15, v1, s[4:7], s34 offen")
    a("buffer_load_dword v15, v1, s[8:11], s34 offen")
    a("buffer_load_dword v15, v1, s[12:15], s34 offen")
    a(f"s_add_u32 s34, s33, {512 * 8192}")
    a("buffer_load_dword v15, v1, s[8:11], s34 offen")
    a("buffer_load_dword v15, v1, s[12:15], s34 offen")
    wave_setup(a)
    a("s_and_b32 s33, s2, 7")
    a("s_lshl_b32 s33, s33, 2")
    a("s_lshr_b32 s34, s2, 3")
    a("s_and_b32 s32, s34, 7")
    a("s_lshr_b32 s34, s34, 3")
    a("s_add_u32 s33, s33, s34")
    a("s_lshl_b32 s37, s32, 8")
    a("s_and_b32 s49, s36, 1")
    a("s_lshr_b32 s50, s36, 1")
    SRD0, SOFF0, SSTR0, SM00 = 64, 84, 89, 94
    for e in range(5):
        sd, vo = SRD0 + 4 * e, 2 + e
        a(f"s_add_u32 s47, s36, {e * 8}")
        a(f"s_mov_b32 s{SOFF0 + e}, 0")
        a(f"s_lshl_b32 s{SM00 + e}, s47, 10")
        if e < 2:
            for q in range(4):
                a(f"s_mov_b32 s{sd + q}, s{4 + q}")
            a(f"s_mov_b32 s{SSTR0 + e}, 64")
            a("v_lshrrev_b32 v8, 2, v0")
            a("s_lshl_b32 s48, s47, 4")
            a("s_add_u32 s48, s48, s37")
            a("v_add_u32 v8, s48, v8")
            a(f"v_mul_u32_u24 v{vo}, 1152, v8")
            a("v_and_b32 v9, 3, v0")
            a("v_lshrrev_b32 v10, 5, v0")
            a("v_lshlrev_b32 v10, 1, v10")
            a("v_xor_b32 v9, v9, v10")
            a(f"v_lshl_add_u32 v{vo}, v9, 4, v{vo}")
        else:
            a("s_cmp_lt_u32 s47, 34")
            a(f"s_cbranch_scc0 L_{name}_q{e}")
            a("s_sub_u32 s47, s47, 16")
            a("s_sub_u32 s48, s47, 9")
            a("s_cmp_lt_u32 s47, 9")
            for q in range(4):
                a(f"s_cselect_b32 s{sd + q}, s{8 + q}, s{12 + q}")
            a("s_cselect_b32 s47, s47, s48")
            a(f"s_mov_b32 s{SSTR0 + e}, {32 * 9216}")
            a("s_lshl_b32 s47, s47, 6")
            a("v_add_u32 v8, s47, v0")
            a("v_mul_u32_u24 v9, 0xe39, v8")
            a("v_lshrrev_b32 v9, 16, v9")
            a("v_mul_u32_u24 v10, 18, v9")
            a("v_sub_u32 v10, v8, v10")
            a("v_bfe_u32 v11, v9, 3, 1")
            a("v_lshlrev_b32 v11, 3, v11")
            a("v_xor_b32 v11, v10, v11")
            a("v_cmp_gt_u32 vcc, 16, v10")
            a("s_nop 1")
            a("v_cndmask_b32 v10, v10, v11, vcc")
            a("v_mul_u32_u24 v9, 9216, v9")
            a("v_lshl_add_u32 v9, v10, 4, v9")
            a("s_mul_i32 s48, s33, 288")
            a(f"v_add_u32 v{vo}, s48, v9")
            a(f"s_branch L_{name}_d{e}")
            a.label(f"L_{name}_q{e}")
            a("s_sub_u32 s47, s47, 34")
            for q in range(4):
                a(f"s_mov_b32 s{sd + q}, s{20 + q}")
            a(f"s_mov_b32 s{SSTR0 + e}, {32 * 3456}")
            a("s_lshl_b32 s47, s47, 6")
            a("v_add_u32 v8, s47, v0")
            a("v_mul_u32_u24 v9, 0xaab, v8")
            a("v_lshrrev_b32 v9, 15, v9")
            a("v_mul_u32_u24 v10, 12, v9")
            a("v_sub_u32 v10, v8, v10")
            a("v_bfe_u32 v11, v9, 3, 1")
            a("v_lshlrev_b32 v11, 1, v11")
            a("v_xor_b32 v10, v10, v11")
            a("v_mul_u32_u24 v9, 3456, v9")
            a("v_lshrrev_b32 v11, 2, v10")
            a("v_mul_u32_u24 v11, 1152, v11")
            a("v_and_b32 v10, 3, v10")
            a("v_add_u32 v9, v9, v11")
            a("v_lshl_add_u32 v9, v10, 4, v9")
            a("s_mul_i32 s48, s33, 36")
            a(f"v_add_u32 v{vo}, s48, v9")
            a.label(f"L_{name}_d{e}")

    def issue_dma(slot):
        buf = slot * STAGE
        for e in range(5):
            a(f"s_add_u32 m0, s{SM00 + e}, {buf}")
            a("s_nop 0")
            a(f"buffer_load_dwordx4 v{2 + e}, {sr(SRD0 + 4 * e, 4)}, s{SOFF0 + e} offen lds")
            a(f"s_add_u32 s{SOFF0 + e}, s{SOFF0 + e}, s{SSTR0 + e}")

    for q in range(NS - 1):
        issue_dma(q)
    make_srd(a, 40, 52, None, 4608 * 1152)
    a("s_lshl_b32 s48, s2, 13")
    a("s_lshl_b32 s47, s36, 10")
    a("v_lshl_add_u32 v8, v0, 4, s47")
    a("buffer_load_dword v14, v8, s[40:43], s48 offen")
    a(f"s_add_u32 s47, s48, {256 * 8192}")
    a("buffer_load_dword v14, v8, s[40:43], s47 offen")
    a(f"s_add_u32 s47, s48, {512 * 8192}")
    a("buffer_load_dword v14, v8, s[40:43], s47 offen")
    make_srd(a, 40, 54, None, 576 * 1152)
    a("buffer_load_dword v14, v8, s[40:43], s48 offen")
    NWARM = 4
    a("v_and_b32 v9, 15, v0")
    a("s_lshl_b32 s47, s49, 7")
    a("v_add_u32 v9, s47, v9")
    a("v_lshlrev_b32 v9, 6, v9")
    a("v_lshrrev_b32 v10, 4, v0")
    a("v_bfe_u32 v11, v0, 3, 1")
    a("v_lshlrev_b32 v11, 1, v11")
    a("v_xor_b32 v10, v10, v11")
    a("v_lshl_add_u32 v7, v10, 4, v9")
    a(f"v_add_u32 v8, {2 * STAGE}, v7")
    ACC = 64
    WF = 16
    XB4 = [40, 44, 48, 10]
    WA = 52
    for i in range(NJ * MI * 4):
        a(f"v_mov_b32 v{ACC + i}, 0")

    def w_addr_setup(isq):
        RB = 192 if isq else 288
        a("v_lshrrev_b32 v9, 4, v0")
        a("v_bfe_u32 v10, v0, 2, 2")
        a("v_lshl_add_u32 v10, v9, 3, v10")
        a(f"v_mul_u32_u24 v10, {RB}, v10")
        a("v_and_b32 v11, 1, v0")
        a("v_lshl_add_u32 v10, v11, 3, v10")
        a("v_and_b32 v9, 1, v9")
        a(f"v_lshlrev_b32 v9, {1 if isq else 3}, v9")
        a("v_bfe_u32 v11, v0, 1, 1")
        if not isq:
            a("s_mul_i32 s47, s50, 6")
            a("v_add_u32 v11, s47, v11")
        for j in range(6):
            jj = j if isq else j % 3
            base = WQ_OFF if isq else (WG_OFF if j < 3 else WU_OFF)
            a(f"v_add_u32 v12, {2 * jj}, v11")
            a("v_xor_b32 v13, v12, v9")
            if not isq:
                a("v_cmp_gt_u32 vcc, 16, v12")
                a("s_nop 1")
                a("v_cndmask_b32 v13, v12, v13, vcc")
            a(f"v_lshl_add_u32 v{WA + j}, v13, 4, v10")
            a(f"v_add_u32 v{WA + j}, {base}, v{WA + j}")
            a(f"v_add_u32 v{WA + 6 + j}, {2 * STAGE}, v{WA + j}")

    def rd_x(slot, i):
        buf = (slot % 2) * STAGE
        a(f"ds_read_b128 {vr(XB4[i % 4], 4)}, {'v7' if slot < 2 else 'v8'} offset:{buf + i * 1024}")

    def rd_w(slot, j, RB):
        buf = (slot % 2) * STAGE
        wa = WA + j + (0 if slot < 2 else 6)
        a(f"ds_read_b64_tr_b16 {vr(WF + 4 * j, 2)}, v{wa} offset:{buf}")
        a(f"ds_read_b64_tr_b16 {vr(WF + 4 * j + 2, 2)}, v{wa} offset:{buf + 4 * RB}")

    def stage(slot, isq, wait, prefetch, nxt):
        RB = 192 if isq else 288
        nslot = (slot + 1) % NS
        if wait is not None:
            a(f"s_waitcnt vmcnt({wait})")
            a("s_barrier")
        if prefetch:
            issue_dma((slot + NS - 1) % NS)
        for i in range(MI):
            if i >= 3:
                young = 3 if nxt else min(3, MI - 1 - i)
                a(f"s_waitcnt lgkmcnt({young})")
            for j in range(NJ):
                if i == 0:
                    a(f"s_waitcnt lgkmcnt({2 * (5 - j) + 1})")
                d = vr(ACC + (j * MI + i) * 4, 4)
                xw = vr(XB4[i % 4], 4)
                ww = vr(WF + 4 * j, 4)
                if isq and j >= 4:
                    a(f"v_mfma_f32_16x16x32_bf16 {d}, {xw}, {ww}, {d}")
                else:
                    a(f"v_mfma_f32_16x16x32_bf16 {d}, {ww}, {xw}, {d}")
                if i == MI - 1 and nxt:
                    rd_w(nslot, j, RB)
            if i + 4 < MI:
                rd_x(slot, i + 4)
            elif nxt:
                rd_x(nslot, i + 4 - MI)

    def mainloop(isq, tag):
        RB = 192 if isq else 288
        a(f"s_waitcnt vmcnt({(NS - 2) * 5 + NWARM})")
        a("s_barrier")
        rd_x(0, 0)
        rd_x(0, 1)
        rd_x(0, 2)
        for j in range(NJ):
            rd_w(0, j, RB)
        rd_x(0, 3)
        a(f"s_mov_b32 s62, 3")
        a.label(f"L_{name}_loop{tag}")
        for slot in range(NS):
            stage(slot, isq, (NS - 3) * 5, True, True)
        a("s_sub_u32 s62, s62, 1")
        a("s_cmp_lg_u32 s62, 0")
        a(f"s_cbranch_scc1 L_{name}_loop{tag}")
        ntail = 6
        for t in range(ntail):
            rem = ntail - 1 - t
            wait = max(0, min(NS - 3, rem - 1)) * 5 if rem >= 1 else None
            stage(t % NS, isq, wait, rem >= NS - 1, rem >= 1)
        a("s_nop 7")
        a("s_nop 1")

    def acc(j, i, r):
        return ACC + (j * MI + i) * 4 + r

    PIT = 288 + 16
    a("s_cmp_eq_u32 s50, 3")
    a(f"s_cbranch_scc1 L_{name}_qpath")
    w_addr_setup(False)
    mainloop(False, "g")
    a("s_barrier")
    a("v_and_b32 v1, 15, v0")
    a("s_lshl_b32 s47, s49, 7")
    a("v_add_u32 v1, s47, v1")
    a(f"v_mul_u32_u24 v1, {PIT}, v1")
    a("v_lshrrev_b32 v2, 4, v0")
    a("v_lshl_add_u32 v1, v2, 3, v1")
    a("s_mul_i32 s56, s50, 96")
    a("v_add_u32 v1, s56, v1")
    a("s_mov_b32 s57, 0xffff0000")
    for i in range(MI):
        for jj in range(3):
            t = 16 + (jj & 1) * 16
            a(f"v_cvt_pk_bf16_f32 v{t}, v{acc(jj, i, 0)}, v{acc(jj, i, 1)}")
            a(f"v_cvt_pk_bf16_f32 v{t + 1}, v{acc(jj, i, 2)}, v{acc(jj, i, 3)}")
            a(f"v_cvt_pk_bf16_f32 v{t + 2}, v{acc(jj + 3, i, 0)}, v{acc(jj + 3, i, 1)}")
            a(f"v_cvt_pk_bf16_f32 v{t + 3}, v{acc(jj + 3, i, 2)}, v{acc(jj + 3, i, 3)}")
            a(f"v_lshlrev_b32 v{t + 4}, 16, v{t}")
            a(f"v_and_b32 v{t + 5}, s57, v{t}")
            a(f"v_lshlrev_b32 v{t + 6}, 16, v{t + 1}")
            a(f"v_and_b32 v{t + 7}, s57, v{t + 1}")
            a(f"v_lshlrev_b32 v{t + 8}, 16, v{t + 2}")
            a(f"v_and_b32 v{t + 9}, s57, v{t + 2}")
            a(f"v_lshlrev_b32 v{t + 10}, 16, v{t + 3}")
            a(f"v_and_b32 v{t + 11}, s57, v{t + 3}")
            for r in range(4):
                a(f"v_mul_f32 v{t + 4 + r}, v{t + 4 + r}, v{t + 8 + r}")
            a(f"v_cvt_pk_bf16_f32 v{t + 12}, v{t + 4}, v{t + 5}")
            a(f"v_cvt_pk_bf16_f32 v{t + 13}, v{t + 6}, v{t + 7}")
            a(f"ds_write_b64 v1, {vr(t + 12, 2)} offset:{i * 16 * PIT + jj * 32}")
    a(f"s_branch L_{name}_hstore")
    a.label(f"L_{name}_qpath")
    w_addr_setup(True)
    mainloop(True, "q")
    a("s_barrier")
    a("v_and_b32 v1, 15, v0")
    a("s_lshl_b32 s47, s49, 7")
    a("s_add_u32 s47, s47, s37")
    a("v_add_u32 v1, s47, v1")
    a("v_lshlrev_b32 v2, 4, v1")
    a("v_lshrrev_b32 v3, 5, v0")
    a("v_lshl_add_u32 v2, v3, 15, v2")
    a("v_bfe_u32 v3, v0, 4, 1")
    a("v_lshl_add_u32 v2, v3, 3, v2")
    a("v_lshlrev_b32 v3, 2, v1")
    a(f"s_mov_b32 s63, 0x{fbits(QSCALE):08x}")
    a("v_cmp_gt_u32 vcc, 16, v0")
    for sel in range(2):
        a("s_lshl_b32 s56, s33, 16")
        a(f"s_add_u32 s56, s56, {sel * 0x200000}")
        a("s_lshl_b32 s57, s33, 13")
        a(f"s_add_u32 s57, s57, {Q2_OFF + sel * 0x40000}")
        j0 = 2 * sel
        for i in range(MI):
            if sel == 0:
                for r in range(4):
                    a(f"v_mul_f32 v{acc(0, i, r)}, s63, v{acc(0, i, r)}")
                a(f"v_mul_f32 v{acc(1, i, 0)}, s63, v{acc(1, i, 0)}")
                a(f"v_mul_f32 v{acc(1, i, 1)}, s63, v{acc(1, i, 1)}")
            a(f"v_cvt_pk_bf16_f32 v{16 + 4 * i}, v{acc(j0, i, 0)}, v{acc(j0, i, 1)}")
            a(f"v_cvt_pk_bf16_f32 v{17 + 4 * i}, v{acc(j0, i, 2)}, v{acc(j0, i, 3)}")
            a(f"v_cvt_pk_bf16_f32 v{18 + 4 * i}, v{acc(j0 + 1, i, 0)}, v{acc(j0 + 1, i, 1)}")
        for i in range(MI):
            a(f"buffer_store_dwordx2 {vr(16 + 4 * i, 2)}, v2, s[16:19], s56 offen offset:{256 * i}")
        a("s_and_saveexec_b64 s[58:59], vcc")
        for i in range(MI):
            a(f"buffer_store_dword v{18 + 4 * i}, v3, s[16:19], s57 offen offset:{64 * i}")
        a("s_mov_b64 exec, s[58:59]")
        a("s_nop 1")
    a("v_bfe_u32 v1, v0, 4, 1")
    a("v_lshlrev_b32 v1, 3, v1")
    a("v_bfe_u32 v2, v0, 5, 1")
    a("v_lshl_add_u32 v1, v2, 2, v1")
    a("s_lshl_b32 s47, s49, 7")
    a("s_add_u32 s47, s47, s37")
    a("v_add_u32 v1, s47, v1")
    a("v_lshlrev_b32 v1, 1, v1")
    a("v_and_b32 v2, 15, v0")
    a("v_lshl_add_u32 v1, v2, 12, v1")
    a("s_mul_i32 s56, s33, 73728")
    a(f"s_add_u32 s56, s56, {VT_OFF}")
    a("s_add_u32 s57, s56, 65536")
    for j in range(2):
        for i in range(MI):
            a(f"v_cvt_pk_bf16_f32 v{16 + 16 * j + 2 * i}, v{acc(4 + j, i, 0)}, v{acc(4 + j, i, 1)}")
            a(f"v_cvt_pk_bf16_f32 v{17 + 16 * j + 2 * i}, v{acc(4 + j, i, 2)}, v{acc(4 + j, i, 3)}")
    for i in range(MI):
        a(f"buffer_store_dwordx2 {vr(16 + 2 * i, 2)}, v1, s[16:19], s56 offen offset:{32 * i}")
    a("v_cmp_gt_u32 vcc, 2, v2")
    a("s_and_saveexec_b64 s[58:59], vcc")
    for i in range(MI):
        a(f"buffer_store_dwordx2 {vr(32 + 2 * i, 2)}, v1, s[16:19], s57 offen offset:{32 * i}")
    a("s_mov_b64 exec, s[58:59]")
    a.label(f"L_{name}_hstore")
    a("s_waitcnt lgkmcnt(0)")
    a("s_barrier")
    NT, NQ = 512, 9
    a("s_lshl_b32 s47, s36, 6")
    a("v_add_u32 v1, s47, v0")
    a("s_mul_i32 s56, s33, 288")
    a(f"s_add_u32 s56, s56, {H_OFF}")
    a("s_mul_i32 s57, s37, 9216")
    a("s_add_u32 s56, s56, s57")
    a("s_mov_b32 s57, 9216")
    a("s_mov_b32 s58, 0x38e38e39")
    for q in range(NQ):
        a(f"v_add_u32 v2, {q * NT}, v1")
        a("v_mul_hi_u32 v3, v2, s58")
        a("v_lshrrev_b32 v3, 2, v3")
        a("v_mul_u32_u24 v4, 18, v3")
        a("v_sub_u32 v4, v2, v4")
        a(f"v_mul_u32_u24 v5, {PIT}, v3")
        a("v_lshl_add_u32 v5, v4, 4, v5")
        a(f"ds_read_b128 {vr(64 + 4 * q, 4)}, v5")
        a("v_mul_lo_u32 v3, v3, s57")
        a(f"v_lshl_add_u32 v{50 + q}, v4, 4, v3")
    for q in range(NQ):
        a(f"s_waitcnt lgkmcnt({NQ - 1 - q})")
        a(f"buffer_store_dwordx4 {vr(64 + 4 * q, 4)}, v{50 + q}, s[16:19], s56 offen")
    gate_code(a, name)
    a.label(f"L_{name}_end")
    a("s_endpgm")
    kernel_desc(a, name, 256, 102)


B_V = 16384
B_VSTR = 1040
B_K2 = B_V + 19 * B_VSTR
B_BUF = B_K2 + 2048
K2_LDS = 81920


def attn_role(a, name):
    a(f"s_load_dwordx2 s[24:25], s[0:1], {ARG_WS}")
    a("s_and_b32 s32, s2, 31")
    a("s_lshr_b32 s33, s2, 5")
    a("v_lshlrev_b32 v1, 4, v0")
    a("s_waitcnt lgkmcnt(0)")
    make_srd(a, 4, 24, None, WS_SIZE)
    GO, GI, LO = 40, 46, 52
    for e in range(5):
        a(f"s_add_u32 s60, s36, {8 * e}")
        if e < 2:
            a("s_lshl_b32 s61, s32, 16")
            a(f"s_add_u32 s61, s61, {K16_OFF + e * 32768}")
            a("s_lshl_b32 s62, s36, 10")
            a(f"s_add_u32 s{GO + e}, s61, s62")
            a(f"s_mov_b32 s{GI + e}, 8192")
            a(f"s_add_u32 s{LO + e}, s62, {e * 8192}")
        elif e < 4:
            a("s_sub_u32 s60, s60, 16")
            a("s_mul_i32 s61, s32, 73728")
            a(f"s_add_u32 s61, s61, {VT_OFF}")
            a("s_lshl_b32 s62, s60, 12")
            a(f"s_add_u32 s{GO + e}, s61, s62")
            a(f"s_mov_b32 s{GI + e}, 1024")
            a(f"s_mul_i32 s{LO + e}, s60, {B_VSTR}")
            a(f"s_add_u32 s{LO + e}, s{LO + e}, {B_V}")
        else:
            a("s_mul_i32 s61, s32, 73728")
            a(f"s_add_u32 s61, s61, {VT_OFF + 16 * 4096}")
            a("s_lshl_b32 s62, s36, 12")
            a("s_add_u32 s61, s61, s62")
            a(f"s_mul_i32 s63, s36, {B_VSTR}")
            a(f"s_add_u32 s63, s63, {B_V + 16 * B_VSTR}")
            a("s_lshl_b32 s64, s32, 13")
            a(f"s_add_u32 s64, s64, {K2_OFF - 2048}")
            a("s_lshl_b32 s62, s36, 10")
            a("s_add_u32 s64, s64, s62")
            a(f"s_add_u32 s65, s62, {B_K2 - 2048}")
            a("s_cmp_lt_u32 s36, 2")
            a(f"s_cselect_b32 s{GO + e}, s61, s64")
            a(f"s_cselect_b32 s{LO + e}, s63, s65")
            a(f"s_cselect_b32 s{GI + e}, 1024, 2048") if False else None
            a("s_mov_b32 s66, 1024")
            a(f"s_cselect_b32 s{GI + e}, s66, 2048")
            a("s_cmp_lt_u32 s36, 4")
            a(f"s_cselect_b32 s{LO + e}, s{LO + e}, {K2_LDS + 2048}")

    def issue_chunk(buf_sgpr):
        for e in range(5):
            a(f"s_add_u32 m0, s{LO + e}, {buf_sgpr}")
            a("s_nop 0")
            a(f"buffer_load_dwordx4 v1, s[4:7], s{GO + e} offen lds")
            a(f"s_add_u32 s{GO + e}, s{GO + e}, s{GI + e}")

    a("s_setprio 2")
    QF1, QF2 = 8, 12
    a("v_and_b32 v2, 31, v0")
    a("s_lshl_b32 s60, s33, 8")
    a("s_lshl_b32 s61, s36, 5")
    a("s_add_u32 s60, s60, s61")
    a("v_add_u32 v2, s60, v2")
    a("v_lshrrev_b32 v3, 5, v0")
    a("v_lshlrev_b32 v4, 4, v2")
    a("v_lshl_add_u32 v4, v3, 15, v4")
    a("s_lshl_b32 s60, s32, 16")
    a(f"s_add_u32 s60, s60, {Q16_OFF}")
    a(f"buffer_load_dwordx4 {vr(QF1, 4)}, v4, s[4:7], s60 offen")
    a("v_lshlrev_b32 v4, 2, v2")
    a("s_lshl_b32 s60, s32, 13")
    a(f"s_add_u32 s60, s60, {Q2_OFF}")
    a(f"buffer_load_dword v{QF2}, v4, s[4:7], s60 offen")
    issue_chunk("0")
    issue_chunk(str(B_BUF))
    for r in range(1, 4):
        a(f"v_mov_b32 v{QF2 + r}, 0")
    a("v_mov_b32 v110, 0x3f803f80")
    a("v_mov_b32 v111, 0x3f803f80")
    a("s_and_b32 s60, s36, 1")
    a("s_lshl_b32 s60, s60, 9")
    a("s_lshr_b32 s61, s36, 1")
    a("s_and_b32 s61, s61, 1")
    a(f"s_mul_i32 s61, s61, {B_BUF}")
    a("s_add_u32 s60, s60, s61")
    a("v_lshlrev_b32 v4, 3, v0")
    a("v_add_u32 v4, s60, v4")
    a(f"v_add_u32 v4, {B_V + 18 * B_VSTR}, v4")
    a("ds_write_b64 v4, v[110:111]")
    a("v_and_b32 v4, 31, v0")
    a("v_lshlrev_b32 v5, 4, v4")
    a("v_lshl_add_u32 v5, v3, 13, v5")
    a("v_lshlrev_b32 v6, 2, v4")
    a(f"v_add_u32 v6, {B_K2}, v6")
    a("v_min_u32 v7, 18, v4")
    a(f"v_mul_u32_u24 v7, {B_VSTR}, v7")
    a("v_lshl_add_u32 v7, v3, 4, v7")
    a(f"v_add_u32 v7, {B_V}, v7")
    a(f"v_add_u32 v120, {B_BUF}, v5")
    a(f"v_add_u32 v121, {B_BUF}, v6")
    a(f"v_add_u32 v122, {B_BUF}, v7")
    KF, K2F, VF = 16, 20, 24
    SA, SB = 32, 48
    PF = 64
    OA = 72
    NEGM = 88
    VT1, VT2, VAL = 104, 105, 106
    for r in range(1, 4):
        a(f"v_mov_b32 v{K2F + r}, 0")
    for r in range(16):
        a(f"v_mov_b32 v{OA + r}, 0")
    for r in range(8):
        a(f"v_mov_b32 v{PF + r}, 0")
    a("s_waitcnt vmcnt(5) lgkmcnt(0)")
    a("v_cmp_gt_u32 vcc, 32, v0")
    a("s_nop 1")
    a(f"v_cndmask_b32 v{QF2}, 0, v{QF2}, vcc")
    a("s_barrier")

    def read_K(t):
        ka, k2a = ("v5", "v6") if t < 16 else ("v120", "v121")
        tt = t % 16
        a(f"ds_read_b128 {vr(KF, 4)}, {ka} offset:{tt * 512}")
        a(f"ds_read_b32 v{K2F}, {k2a} offset:{tt * 128}")

    def read_V(t):
        for b in range(2):
            a(f"ds_read_b128 {vr(VF + 4 * b, 4)}, v7 offset:{t * 64 + b * 32}")

    def tile_max_ops(S):
        mx = [f"v_max3_f32 v{VT1}, v{S}, v{S + 1}, v{S + 2}"]
        for k in range(6):
            mx.append(f"v_max3_f32 v{VT1}, v{S + 3 + 2 * k}, v{S + 4 + 2 * k}, v{VT1}")
        mx.append(f"v_max_f32 v{VT1}, v{S + 15}, v{VT1}")
        return mx

    def cross_half_max():
        a(f"v_mov_b32 v{VT2}, v{VT1}")
        a("s_nop 1")
        a(f"v_permlane32_swap_b32 v{VT1}, v{VT2}")
        a("s_nop 1")
        a(f"v_max_f32 v{VT1}, v{VT1}, v{VT2}")

    def pv_mfma(b):
        d = vr(OA, 16)
        return f"v_mfma_f32_32x32x16_bf16 {d}, {vr(VF + 4 * b, 4)}, {vr(PF + 4 * b, 4)}, {d}"

    def qk_mfma(S, n, c=None):
        d = vr(S, 16)
        if n:
            return f"v_mfma_f32_32x32x16_bf16 {d}, {vr(K2F, 4)}, {vr(QF2, 4)}, {d}"
        return f"v_mfma_f32_32x32x16_bf16 {d}, {vr(KF, 4)}, {vr(QF1, 4)}, {c if c else vr(NEGM, 16)}"

    rare = []

    def iteration(t):
        S, Sn = (SA, SB) if t % 2 == 0 else (SB, SA)
        mx = tile_max_ops(S)
        a("s_waitcnt lgkmcnt(2)")
        for k in range(8):
            if k % 4 == 0 and 'bnomfma' not in ABL:
                a(pv_mfma(k // 4))
            if 'bnomax' not in ABL:
                a(mx[k])
        if 'bnods' not in ABL:
            read_V(t)
        if 'bnomax' not in ABL:
            a(f"v_cmp_lt_f32 vcc, 0x41000000, v{VT1}")
            a(f"s_cbranch_vccnz L_{name}_rs{t}")
        a.label(f"L_{name}_ct{t}")
        rare.append((S, t))
        a("s_waitcnt lgkmcnt(2)")
        for k in range(16):
            if k % 8 == 0 and 'bnomfma' not in ABL:
                a(qk_mfma(Sn, k // 8))
            if 'bnoexp' not in ABL:
                a(f"v_exp_f32 v{S + k}, v{S + k}")
        if 'bnods' not in ABL:
            read_K(t + 2)
        for k in range(8):
            if 'bnocvt' not in ABL:
                a(f"v_cvt_pk_bf16_f32 v{PF + k}, v{S + 2 * k}, v{S + 2 * k + 1}")

    read_K(0)
    a("s_waitcnt lgkmcnt(0)")
    a(qk_mfma(SA, 0, "0"))
    a(qk_mfma(SA, 1))
    read_V(0)
    read_K(1)
    a("s_nop 15")
    for op in tile_max_ops(SA):
        a(op)
    cross_half_max()
    for k in range(16):
        a(f"v_sub_f32 v{SA + k}, v{SA + k}, v{VT1}")
    for r in range(16):
        a(f"v_sub_f32 v{NEGM + r}, 0, v{VT1}")
    a("s_mov_b32 s58, 0")
    a("s_mov_b32 s59, 0")
    a.label(f"L_{name}_loop")
    for t in range(16):
        iteration(t)
        if t == 1:
            a("s_barrier")
            a("s_cmp_eq_u32 s58, 0")
            a(f"s_cbranch_scc1 L_{name}_nf")
            a("s_cmp_eq_u32 s58, 3")
            a(f"s_cbranch_scc1 L_{name}_nf")
            issue_chunk("s59")
            a.label(f"L_{name}_nf")
        if t == 13:
            a("s_waitcnt vmcnt(0)")
            a("s_barrier")
    for (x, y) in (("v5", "v120"), ("v6", "v121"), ("v7", "v122")):
        a(f"v_swap_b32 {x}, {y}")
    a("s_and_b32 s59, s58, 1")
    a(f"s_mul_i32 s59, s59, {B_BUF}")
    a("s_add_u32 s58, s58, 1")
    a("s_cmp_lt_u32 s58, 4")
    a(f"s_cbranch_scc1 L_{name}_loop")
    a("s_waitcnt lgkmcnt(0)")
    a("s_nop 0")
    a(pv_mfma(0))
    a(pv_mfma(1))
    a(f"s_branch L_{name}_fin")
    for (S, t) in rare:
        a.label(f"L_{name}_rs{t}")
        a("s_nop 15")
        cross_half_max()
        a(f"v_max_f32 v{VT1}, 0, v{VT1}")
        a(f"v_sub_f32 v{VAL}, 0, v{VT1}")
        a(f"v_exp_f32 v{VAL}, v{VAL}")
        for k in range(16):
            a(f"v_sub_f32 v{S + k}, v{S + k}, v{VT1}")
        for r in range(16):
            a(f"v_sub_f32 v{NEGM + r}, v{NEGM + r}, v{VT1}")
        for r in range(12):
            a(f"v_mul_f32 v{OA + r}, v{OA + r}, v{VAL}")
        a("s_nop 1")
        a(f"s_branch L_{name}_ct{t}")
    a.label(f"L_{name}_fin")
    a("s_nop 15")
    a("s_nop 7")
    a(f"v_mov_b32 v{VT1}, v{OA + 10}")
    a(f"v_mov_b32 v{VT2}, v{OA + 10}")
    a("s_nop 1")
    a(f"v_permlane32_swap_b32 v{VT1}, v{VT2}")
    a("s_nop 1")
    a(f"v_rcp_f32 v{VT1}, v{VT1}")
    a("s_nop 0")
    for r in range(12):
        a(f"v_mul_f32 v{OA + r}, v{OA + r}, v{VT1}")
    for k in range(6):
        a(f"v_cvt_pk_bf16_f32 v{PF + k}, v{OA + 2 * k}, v{OA + 2 * k + 1}")
    a("v_mul_u32_u24 v4, 1152, v2")
    a("v_lshl_add_u32 v4, v3, 3, v4")
    a("s_mul_i32 s60, s32, 36")
    a(f"s_add_u32 s60, s60, {O_OFF}")
    a(f"buffer_store_dword v{PF}, v4, s[4:7], s60 offen")
    a(f"buffer_store_dword v{PF + 1}, v4, s[4:7], s60 offen offset:4")
    a(f"buffer_store_dword v{PF + 2}, v4, s[4:7], s60 offen offset:16")
    a(f"buffer_store_dword v{PF + 3}, v4, s[4:7], s60 offen offset:20")
    a("v_cmp_gt_u32 vcc, 32, v0")
    a("s_and_saveexec_b64 s[44:45], vcc")
    a(f"buffer_store_dword v{PF + 4}, v4, s[4:7], s60 offen offset:32")
    a("s_endpgm")


def gen_k2(a, name):
    kernel_begin(a, name)
    a(f"s_cmp_ge_u32 s2, {256 if 'attonly' in ABL else 256 + 192}")
    a(f"s_cbranch_scc1 L_{name}_end")
    wave_setup(a)
    a("s_cmp_lt_u32 s2, 256")
    a(f"s_cbranch_scc0 L_{name}_gemm")
    attn_role(a, name)
    a.label(f"L_{name}_gemm")
    gemm_phase(a, name, "fin")
    a.label(f"L_{name}_end")
    a("s_endpgm")
    kernel_desc(a, name, 128, 102)


def gen_k3(a, name):
    kernel_begin(a, name)
    a("s_cmp_ge_u32 s2, 192")
    a(f"s_cbranch_scc1 L_{name}_end")
    wave_setup(a)
    gemm_phase(a, name, "wo")
    a.label(f"L_{name}_end")
    a("s_endpgm")
    kernel_desc(a, name, 160, 102)


def gen_reduce(a, name):
    kernel_begin(a, name)
    a("s_cmp_ge_u32 s2, 512")
    a(f"s_cbranch_scc1 L_{name}_end")
    a(f"s_load_dwordx2 s[24:25], s[0:1], {ARG_WS}")
    a(f"s_load_dwordx2 s[26:27], s[0:1], {ARG_X}")
    a(f"s_load_dwordx2 s[28:29], s[0:1], {ARG_GW}")
    a(f"s_load_dwordx2 s[30:31], s[0:1], {ARG_OUT}")
    a("v_lshrrev_b32 v1, 6, v0")
    a("v_and_b32 v0, 63, v0")
    a("s_nop 0")
    a("v_readfirstlane_b32 s36, v1")
    a("s_lshl_b32 s37, s2, 2")
    a("s_add_u32 s37, s37, s36")
    a("s_waitcnt lgkmcnt(0)")
    make_srd(a, 4, 24, None, WS_SIZE)
    make_srd(a, 8, 26, None, 2048 * 1152)
    make_srd(a, 12, 28, None, 1152)
    make_srd(a, 16, 30, None, 2048 * 1152)
    a("v_lshlrev_b32 v1, 3, v0")
    a("v_lshlrev_b32 v2, 4, v0")
    a("s_mul_i32 s38, s37, 1152")
    a("s_mul_i32 s39, s37, 2304")
    a("s_mov_b32 s57, 0xffff0000")
    a("v_cmp_gt_u32 s[40:41], 16, v0")
    for c in range(3):
        if c == 2:
            a("s_mov_b64 s[42:43], exec")
            a("s_mov_b64 exec, s[40:41]")
        a(f"buffer_load_dwordx2 {vr(4 + 2 * c, 2)}, v1, s[8:11], s38 offen offset:{512 * c}")
        a(f"buffer_load_dwordx2 {vr(10 + 2 * c, 2)}, v1, s[12:15], 0 offen offset:{512 * c}")
        if c == 2:
            a("s_mov_b64 exec, s[42:43]")
    for c in range(3):
        if c == 2:
            a("s_mov_b64 exec, s[40:41]")
        for sp in range(5):
            a(f"s_add_u32 s44, s39, {P_OFF + sp * P_STRIDE}")
            a(f"buffer_load_dwordx4 {vr(32 + (c * 5 + sp) * 4, 4)}, v2, s[4:7], s44 offen offset:{1024 * c}")
        if c == 2:
            a("s_mov_b64 exec, s[42:43]")
    a("v_mov_b32 v16, 0")
    a("s_waitcnt vmcnt(15)")
    for c in range(3):
        if c == 2:
            a("s_mov_b64 exec, s[40:41]")
        for h in range(2):
            xr, gr = 4 + 2 * c + h, 10 + 2 * c + h
            a(f"v_lshlrev_b32 v17, 16, v{xr}")
            a(f"v_and_b32 v18, s57, v{xr}")
            a(f"v_lshlrev_b32 v19, 16, v{gr}")
            a(f"v_and_b32 v20, s57, v{gr}")
            a("v_mul_f32 v17, v17, v19")
            a("v_mul_f32 v18, v18, v20")
            a("v_cvt_pk_bf16_f32 v17, v17, v18")
            a("v_lshlrev_b32 v18, 16, v17")
            a("v_and_b32 v17, s57, v17")
            a("v_add_f32 v16, v16, v18")
            a("v_add_f32 v16, v16, v17")
        if c == 2:
            a("s_mov_b64 exec, s[42:43]")
    for m in (1, 2, 4, 8, 16):
        a(f"ds_swizzle_b32 v17, v16 offset:0x{(m << 10) | 0x1f:04x}")
        a("s_waitcnt lgkmcnt(0)")
        a("v_add_f32 v16, v16, v17")
    a("v_mov_b32 v17, v16")
    a("s_nop 1")
    a("v_permlane32_swap_b32 v16, v17")
    a("s_nop 1")
    a("v_add_f32 v16, v16, v17")
    a("v_cvt_pk_bf16_f32 v16, v16, v16")
    a("v_and_b32 v16, s57, v16")
    a("v_mul_f32 v16, 0xbfb8aa3b, v16")
    a("v_exp_f32 v16, v16")
    a("s_nop 0")
    a("v_add_f32 v16, 1.0, v16")
    a("v_rcp_f32 v16, v16")
    a("s_nop 0")
    a("v_cvt_pk_bf16_f32 v16, v16, v16")
    a("v_and_b32 v16, s57, v16")
    a("v_sub_f32 v17, 1.0, v16")
    a("v_cvt_pk_bf16_f32 v17, v17, v17")
    a("v_and_b32 v17, s57, v17")
    a("s_waitcnt vmcnt(0)")
    for c in range(3):
        for r in range(4):
            b0 = 32 + (c * 5) * 4 + r
            a(f"v_add_f32 v{b0}, v{b0}, v{b0 + 4}")
            a(f"v_add_f32 v{b0 + 8}, v{b0 + 8}, v{b0 + 12}")
            a(f"v_add_f32 v{b0}, v{b0}, v{b0 + 8}")
            a(f"v_cvt_pk_bf16_f32 v18, v{b0}, v{b0 + 16}")
            a("v_lshlrev_b32 v19, 16, v18")
            a("v_and_b32 v18, s57, v18")
            a("v_mul_f32 v18, v18, v16")
            a("v_mul_f32 v19, v19, v17")
            a("v_cvt_pk_bf16_f32 v18, v18, v19")
            a("v_lshlrev_b32 v19, 16, v18")
            a("v_and_b32 v18, s57, v18")
            a(f"v_add_f32 v{b0}, v18, v19")
        b0 = 32 + (c * 5) * 4
        a(f"v_cvt_pk_bf16_f32 v{20 + 2 * c}, v{b0}, v{b0 + 1}")
        a(f"v_cvt_pk_bf16_f32 v{21 + 2 * c}, v{b0 + 2}, v{b0 + 3}")
    for c in range(3):
        if c == 2:
            a("s_mov_b64 exec, s[40:41]")
        a(f"buffer_store_dwordx2 {vr(20 + 2 * c, 2)}, v1, s[16:19], s38 offen offset:{512 * c}")
    a.label(f"L_{name}_end")
    a("s_endpgm")
    kernel_desc(a, name, 96)


def main():
    hdr = open("cdna_kernels/" + KNAME + ".s.ref").read().split("\n")
    out = []
    for ln in hdr:
        if ln.startswith("; @launch"):
            break
        out.append(ln)
    k_k1 = "gm_k1_kernel"
    k_k2 = "gm_k2_kernel"
    k_k3 = KNAME + "_kernel"
    out.append(f"; @launch kernel={k_k1} grid=(256,1,1) block=(512,1,1) lds={K1_LDS}")
    out.append(f"; @launch kernel={k_k2} grid=(448,1,1) block=(512,1,1) lds={K2_LDS}")
    out.append(f"; @launch kernel={k_k3} grid=(192,1,1) block=(256,1,1) lds={gemm_lds('wo')}")
    out.append('.amdgcn_target "amdgcn-amd-amdhsa--gfx950"')
    a = Asm()
    gen_k1(a, k_k1)
    gen_k2(a, k_k2)
    gen_k3(a, k_k3)
    txt = "\n".join(out) + "\n" + a.text()
    dst = sys.argv[1] if len(sys.argv) > 1 else "cdna_kernels/" + KNAME + ".s"
    open(dst, "w").write(txt)
    print("wrote", dst, len(txt))


if __name__ == "__main__":
    main()
```

```python
import math
import sys
import os
ABL = os.environ.get('ABL', '')

KNAME = "gated_mix__mha_block__glu_gated_bilinear__prompt"

Q16_OFF = 0x000000
K16_OFF = 0x200000
Q2_OFF = 0x400000
K2_OFF = 0x440000
VT_OFF = 0x480000
O_OFF = 0x700000
H_OFF = 0x1000000
G_OFF = 0x6E0000
P_OFF = 0x3000000
WS_SIZE = 0x10000000
P_STRIDE = 2048 * 576 * 4

ARG_X, ARG_WQKV, ARG_WO, ARG_BX, ARG_WG, ARG_WU, ARG_WD, ARG_GW, ARG_OUT, ARG_DBG, ARG_WS = [8 * i for i in range(11)]


class Asm:
    def __init__(self):
        self.lines = []

    def __call__(self, s):
        self.lines.append("    " + s)

    def label(self, s):
        self.lines.append(s + ":")

    def raw(self, s):
        self.lines.append(s)

    def text(self):
        return "\n".join(self.lines) + "\n"


def vr(b, n):
    return f"v[{b}:{b + n - 1}]"


def sr(b, n):
    return f"s[{b}:{b + n - 1}]"


def kernel_begin(a, name):
    a.raw(".text")
    a.raw(f".globl {name}")
    a.raw(".p2align 8")
    a.raw(f".type {name},@function")
    a.label(name)


def kernel_desc(a, name, nvgpr, nsgpr=96):
    a.raw('.section .rodata,"a"')
    a.raw(".p2align 6")
    a.raw(f".amdhsa_kernel {name}")
    a.raw(f"  .amdhsa_next_free_vgpr {nvgpr}")
    a.raw(f"  .amdhsa_next_free_sgpr {nsgpr}")
    a.raw(f"  .amdhsa_accum_offset {((nvgpr + 3) // 4) * 4}")
    a.raw("  .amdhsa_group_segment_fixed_size 0")
    a.raw("  .amdhsa_kernarg_size 88")
    a.raw("  .amdhsa_user_sgpr_count 2")
    a.raw("  .amdhsa_user_sgpr_kernarg_segment_ptr 1")
    a.raw("  .amdhsa_system_sgpr_workgroup_id_x 1")
    a.raw(".end_amdhsa_kernel")


def make_srd(a, d, base_pair, off_sgpr_or_imm, nrec):
    lo, hi = base_pair, base_pair + 1
    if off_sgpr_or_imm is None:
        a(f"s_mov_b32 s{d}, s{lo}")
        a(f"s_and_b32 s{d + 1}, s{hi}, 0xffff")
    else:
        a(f"s_add_u32 s{d}, s{lo}, {off_sgpr_or_imm}")
        a(f"s_addc_u32 s{d + 1}, s{hi}, 0")
        a(f"s_and_b32 s{d + 1}, s{d + 1}, 0xffff")
    a(f"s_mov_b32 s{d + 2}, {nrec}")
    a(f"s_mov_b32 s{d + 3}, 0x20000")


QSCALE = math.log2(math.e) / math.sqrt(18.0)
import struct


def fbits(x):
    return struct.unpack("<I", struct.pack("<f", x))[0]


GEMM_CFG = {
    "qh": dict(NWN=3, NH=1, NJH=2, NWM=4, MI=4, NS=6, KU=2),
    "glu": dict(NWN=3, NH=2, NJH=3, NWM=4, MI=4, NS=4, KU=1),
    "fin": dict(NWN=2, NH=2, NJH=3, NWM=4, MI=2, NS=4, KU=1),
    "wo": dict(NWN=2, NH=1, NJH=3, NWM=2, MI=2, NS=6, KU=2),
}


def gemm_lds(kind):
    c = GEMM_CFG[kind]
    return c["NS"] * (c["NWM"] * c["MI"] * 1024 + c["NH"] * 32 * 32 * c["NJH"] * c["NWN"])


def gemm_phase(a, name, kind):
    c = GEMM_CFG[kind]
    NWN, NH, NJH, NWM, MI, NS = c["NWN"], c["NH"], c["NJH"], c["NWM"], c["MI"], c["NS"]
    KU = c["KU"]
    NSS = NS // KU
    name = name + "_" + kind
    NWAVE = NWM * NWN
    WSH = (16 * MI).bit_length() - 1
    BM = 16 * MI * NWM
    XB = BM * 64
    NXI = BM // 16
    HW = 16 * NJH * NWN
    RB = 2 * HW
    CH = RB // 16
    WBYTES = 32 * RB
    STAGE = XB + NH * WBYTES
    NWI = NH * WBYTES // 1024
    NJ = NJH * NH
    a(f"s_load_dwordx2 s[24:25], s[0:1], {ARG_WS}")
    a(f"s_load_dwordx2 s[26:27], s[0:1], {ARG_X}")
    if kind == "qh":
        a(f"s_load_dwordx2 s[28:29], s[0:1], {ARG_WQKV}")
    elif kind == "glu":
        a(f"s_load_dwordx2 s[28:29], s[0:1], {ARG_WG}")
        a(f"s_load_dwordx2 s[30:31], s[0:1], {ARG_WU}")
    elif kind == "fin":
        a(f"s_load_dwordx2 s[28:29], s[0:1], {ARG_WD}")
    else:
        a(f"s_load_dwordx2 s[28:29], s[0:1], {ARG_WO}")
    if kind in ("glu", "qh"):
        a("s_and_b32 s33, s2, 7")
        a("s_lshl_b32 s33, s33, 2")
        a("s_lshr_b32 s34, s2, 3")
        a("s_and_b32 s32, s34, 7")
        a("s_lshr_b32 s34, s34, 3")
        a("s_add_u32 s33, s33, s34")
    elif kind == "fin":
        a("s_sub_u32 s35, s2, 256")
        a("s_and_b32 s32, s35, 15")
        a("s_lshr_b32 s33, s35, 4")
        a("s_mul_i32 s34, s33, 0x5556")
        a("s_lshr_b32 s34, s34, 16")
        a("s_mul_i32 s35, s34, 3")
        a("s_sub_u32 s33, s33, s35")
    else:
        a("s_and_b32 s32, s2, 31")
        a("s_lshr_b32 s33, s2, 5")
        a("s_mov_b32 s34, 4")
    a(f"s_mul_i32 s37, s32, {BM}")
    a("s_waitcnt lgkmcnt(0)")
    if kind == "qh":
        make_srd(a, 4, 26, None, 2048 * 1152)
        make_srd(a, 8, 28, None, 576 * 3456)
        make_srd(a, 12, 28, None, 576 * 3456)
        a("s_mov_b32 s38, 1152")
        a("s_mov_b32 s39, 3456")
        a("s_mul_i32 s40, s33, 36")
        a("s_mov_b32 s41, s40")
        a(f"s_mov_b32 s62, {18 // NS - 1}")
    elif kind == "glu":
        make_srd(a, 4, 26, None, 2048 * 1152)
        make_srd(a, 8, 28, None, 576 * 9216)
        make_srd(a, 12, 30, None, 576 * 9216)
        a("s_mov_b32 s38, 1152")
        a("s_mov_b32 s39, 9216")
        a(f"s_mul_i32 s40, s33, {RB}")
        a("s_mov_b32 s41, s40")
        a(f"s_mov_b32 s62, {18 // NS - 1}")
    elif kind == "fin":
        a("s_mul_i32 s42, s34, 2304")
        a(f"s_add_u32 s42, s42, {H_OFF}")
        a(f"s_mul_i32 s60, s34, {1152 * 1152}")
        a(f"s_sub_u32 s61, {4608 * 1152}, s60")
        a(f"s_sub_u32 s43, {WS_SIZE}, s42")
        make_srd(a, 4, 24, "s42", "s43")
        make_srd(a, 8, 28, "s60", "s61")
        make_srd(a, 12, 28, "s60", "s61")
        a("s_movk_i32 s38, 9216")
        a("s_mov_b32 s39, 1152")
        a(f"s_mul_i32 s40, s33, {NH * RB}")
        a(f"s_add_u32 s41, s40, {RB}")
        a(f"s_mov_b32 s62, {36 // NS - 1}")
    else:
        make_srd(a, 4, 24, f"{O_OFF}", 2048 * 1152)
        make_srd(a, 8, 28, None, 576 * 1152)
        make_srd(a, 12, 28, None, 576 * 1152)
        a("s_mov_b32 s38, 1152")
        a("s_mov_b32 s39, 1152")
        a(f"s_mul_i32 s40, s33, {RB}")
        a("s_mov_b32 s41, s40")
        a(f"s_mov_b32 s62, {18 // NS - 1}")
    make_srd(a, 16, 24, None, WS_SIZE)
    PERH = NWI // NH
    NTOT = NXI + NWI
    NSLOT = (NTOT + NWAVE - 1) // NWAVE
    assert NSLOT <= 5
    SRD0, SOFF0, SSTR0, SM00 = 64, 84, 89, 94
    MAGIC, MSH = (0xaab, 15) if CH == 12 else (0xe39, 16)
    for e in range(NSLOT):
        sd = SRD0 + 4 * e
        vo = 32 + e
        a(f"s_add_u32 s47, s36, {e * NWAVE}")
        a(f"s_mov_b32 s{SOFF0 + e}, 0")
        a(f"s_cmp_lt_u32 s47, {NXI}")
        a(f"s_cbranch_scc0 L_{name}_w{e}")
        for q in range(4):
            a(f"s_mov_b32 s{sd + q}, s{4 + q}")
        a(f"s_mov_b32 s{SSTR0 + e}, 64")
        a(f"s_lshl_b32 s{SM00 + e}, s47, 10")
        a("v_lshrrev_b32 v1, 2, v0")
        a("s_lshl_b32 s48, s47, 4")
        a("s_add_u32 s48, s48, s37")
        a("v_add_u32 v1, s48, v1")
        a(f"v_mul_lo_u32 v{vo}, v1, s38")
        a("v_and_b32 v2, 3, v0")
        a("v_lshrrev_b32 v3, 5, v0")
        a("v_lshlrev_b32 v3, 1, v3")
        a("v_xor_b32 v2, v2, v3")
        a(f"v_lshl_add_u32 v{vo}, v2, 4, v{vo}")
        a(f"s_branch L_{name}_d{e}")
        a.label(f"L_{name}_w{e}")
        a(f"s_cmp_lt_u32 s47, {NTOT}")
        a(f"s_cbranch_scc0 L_{name}_z{e}")
        a(f"s_sub_u32 s47, s47, {NXI}")
        a(f"s_lshl_b32 s{SM00 + e}, s47, 10")
        a(f"s_add_u32 s{SM00 + e}, s{SM00 + e}, {XB}")
        a(f"s_lshl_b32 s{SSTR0 + e}, s39, 5")
        a(f"s_sub_u32 s48, s47, {PERH}")
        a(f"s_cmp_lt_u32 s47, {PERH}")
        for q in range(4):
            a(f"s_cselect_b32 s{sd + q}, s{8 + q}, s{12 + q}")
        a("s_cselect_b32 s46, s40, s41")
        a("s_cselect_b32 s47, s47, s48")
        a("s_lshl_b32 s47, s47, 6")
        a("v_add_u32 v1, s47, v0")
        a(f"v_mul_u32_u24 v2, {MAGIC}, v1")
        a(f"v_lshrrev_b32 v2, {MSH}, v2")
        a(f"v_mul_u32_u24 v3, {CH}, v2")
        a("v_sub_u32 v3, v1, v3")
        a("v_bfe_u32 v4, v2, 3, 1")
        if CH == 12:
            a("v_lshlrev_b32 v4, 1, v4")
            a("v_xor_b32 v3, v3, v4")
        else:
            a("v_lshlrev_b32 v4, 3, v4")
            a("v_xor_b32 v4, v3, v4")
            a("v_cmp_gt_u32 vcc, 16, v3")
            a("s_nop 1")
            a("v_cndmask_b32 v3, v3, v4, vcc")
        a("v_mul_lo_u32 v2, v2, s39")
        if kind == "qh":
            a("v_lshrrev_b32 v4, 2, v3")
            a("v_mul_u32_u24 v4, 1152, v4")
            a("v_and_b32 v3, 3, v3")
            a("v_add_u32 v2, v2, v4")
        a("v_lshl_add_u32 v2, v3, 4, v2")
        a(f"v_add_u32 v{vo}, s46, v2")
        a(f"s_branch L_{name}_d{e}")
        a.label(f"L_{name}_z{e}")
        a(f"s_mov_b32 s{sd}, s4")
        a(f"s_mov_b32 s{sd + 1}, s5")
        a(f"s_mov_b32 s{sd + 2}, 0")
        a(f"s_mov_b32 s{sd + 3}, 0x20000")
        a(f"s_mov_b32 s{SSTR0 + e}, 0")
        a(f"s_mov_b32 s{SM00 + e}, {LDS_DUMMY}")
        assert LDS_DUMMY + (NS - 1) * STAGE + 1024 <= 262144, (kind, NS, STAGE)
        a(f"v_mov_b32 v{vo}, 0")
        a.label(f"L_{name}_d{e}")
    a(f"s_and_b32 s49, s36, {NWM - 1}")
    a(f"s_lshr_b32 s50, s36, {NWM.bit_length() - 1}")
    a("v_and_b32 v1, 15, v0")
    a(f"s_lshl_b32 s47, s49, {WSH}")
    a("v_add_u32 v1, s47, v1")
    a("v_lshlrev_b32 v1, 6, v1")
    a("v_lshrrev_b32 v2, 4, v0")
    a("v_bfe_u32 v3, v0, 3, 1")
    a("v_lshlrev_b32 v3, 1, v3")
    a("v_xor_b32 v2, v2, v3")
    a("v_lshl_add_u32 v7, v2, 4, v1")
    a("v_lshrrev_b32 v1, 4, v0")
    a("v_bfe_u32 v2, v0, 2, 2")
    a("v_lshl_add_u32 v2, v1, 3, v2")
    a(f"v_mul_u32_u24 v2, {RB}, v2")
    a("v_and_b32 v3, 1, v0")
    a("v_lshl_add_u32 v2, v3, 3, v2")
    a(f"v_add_u32 v2, {XB}, v2")
    a("v_and_b32 v1, 1, v1")
    a(f"v_lshlrev_b32 v1, {1 if CH == 12 else 3}, v1")
    a("v_bfe_u32 v3, v0, 1, 1")
    a(f"s_mul_i32 s47, s50, {2 * NJH}")
    a("v_add_u32 v3, s47, v3")
    for j in range(NJH):
        a(f"v_add_u32 v4, {2 * j}, v3")
        a("v_xor_b32 v8, v4, v1")
        if CH != 12:
            a("v_cmp_gt_u32 vcc, 16, v4")
            a("s_nop 1")
            a("v_cndmask_b32 v8, v4, v8, vcc")
        a(f"v_lshl_add_u32 v{60 + j}, v8, 4, v2")
    ACC = 72
    XF = 40
    WF = 8
    WPW = NSLOT
    for j in range(NJH):
        a(f"v_add_u32 v{56 + j}, {2 * STAGE}, v{60 + j}")
    a(f"v_add_u32 v63, {2 * STAGE}, v7")
    if NS > 4:
        for j in range(NJH):
            a(f"v_add_u32 v{64 + j}, {4 * STAGE}, v{60 + j}")
        a(f"v_add_u32 v67, {4 * STAGE}, v7")

    def issue_dma(slot, only=None):
        buf = slot * STAGE
        for e in range(NSLOT):
            if only is not None and e != only:
                continue
            a(f"s_add_u32 m0, s{SM00 + e}, {buf}")
            a("s_nop 0")
            a(f"buffer_load_dwordx4 v{32 + e}, {sr(SRD0 + 4 * e, 4)}, s{SOFF0 + e} offen lds")
            a(f"s_add_u32 s{SOFF0 + e}, s{SOFF0 + e}, s{SSTR0 + e}")

    if kind == "wo":
        a("v_and_b32 v1, 15, v0")
        a(f"s_lshl_b32 s47, s49, {WSH}")
        a("s_add_u32 s47, s47, s37")
        a("v_add_u32 v1, s47, v1")
        a("v_lshlrev_b32 v5, 3, v1")
        a(f"s_mov_b32 s56, {G_OFF}")
        for i in range(MI):
            a(f"buffer_load_dwordx2 {vr(100 + 2 * i, 2)}, v5, s[16:19], s56 offen offset:{128 * i}")
        a("v_mul_u32_u24 v2, 2304, v1")
        a("v_lshrrev_b32 v3, 4, v0")
        a("v_lshl_add_u32 v2, v3, 4, v2")
        a("s_mul_i32 s56, s50, 192")
        a("s_lshl_b32 s57, s40, 1")
        a("s_add_u32 s56, s56, s57")
        a(f"s_add_u32 s56, s56, {P_OFF}")
        for i in range(MI):
            for j in range(NJ):
                for sp in range(4):
                    a(f"s_add_u32 s58, s56, {sp * P_STRIDE + i * 16 * 2304}")
                    a(f"buffer_load_dwordx4 {vr(104 + (((i * NJ + j) * 4) + sp) * 4, 4)}, v2, s[16:19], s58 offen offset:{j * 64}")
    for q in range(NS - KU):
        issue_dma(q)
    for i in range(NJ * MI * 4):
        a(f"v_mov_b32 v{ACC + i}, 0")

    def rd_x(slot, i):
        buf = (slot % 2) * STAGE
        xa = ["v7", "v63", "v67"][slot // 2]
        a(f"ds_read_b128 {vr(XF + 4 * i, 4)}, {xa} offset:{buf + i * 1024}")

    def rd_w(slot, j):
        buf = (slot % 2) * STAGE
        wb = [60, 56, 64][slot // 2]
        off = buf + (j // NJH) * WBYTES
        a(f"ds_read_b64_tr_b16 {vr(WF + 4 * j, 2)}, v{wb + j % NJH} offset:{off}")
        a(f"ds_read_b64_tr_b16 {vr(WF + 4 * j + 2, 2)}, v{wb + j % NJH} offset:{off + 4 * RB}")

    def stage(slot, swapped, wait, prefetch, nxt, sync=True):
        nslot = (slot + 1) % NS
        if sync:
            if wait is not None:
                a(f"s_waitcnt vmcnt({wait})")
                a("s_barrier")
        pend = []
        if sync and prefetch:
            pend = [((slot + NS - KU + u) % NS, e) for u in range(KU) for e in range(NSLOT)]
        per = (len(pend) + NJ - 1) // NJ
        for j in range(NJ):
            for i in range(MI):
                if j == 0:
                    a(f"s_waitcnt lgkmcnt({MI + 1 - i})")
                elif j == NJ - 1 and i == 0:
                    a(f"s_waitcnt lgkmcnt({2 * (NJ - 1) if nxt else 0})")
                d = vr(ACC + (j * MI + i) * 4, 4)
                if swapped:
                    a(f"v_mfma_f32_16x16x32_bf16 {d}, {vr(WF + 4 * j, 4)}, {vr(XF + 4 * i, 4)}, {d}")
                else:
                    a(f"v_mfma_f32_16x16x32_bf16 {d}, {vr(XF + 4 * i, 4)}, {vr(WF + 4 * j, 4)}, {d}")
                if j == NJ - 1 and nxt:
                    rd_x(nslot, i)
            for (sl, e) in pend[j * per:(j + 1) * per]:
                issue_dma(sl, e)
            if nxt:
                rd_w(nslot, j)

    def mainloop(swapped, tag):
        W1 = KU * WPW
        a(f"s_waitcnt vmcnt({(NSS - 2) * W1})")
        a("s_barrier")
        for j in range(NJ - 1):
            rd_w(0, j)
        for i in range(MI):
            rd_x(0, i)
        rd_w(0, NJ - 1)
        a.label(f"L_{name}_loop{tag}")
        for slot in range(NS):
            stage(slot, swapped, (NSS - 3) * W1, True, True, slot % KU == 0)
        a("s_sub_u32 s62, s62, 1")
        a("s_cmp_lg_u32 s62, 0")
        a(f"s_cbranch_scc1 L_{name}_loop{tag}")
        ntail = NS + (18 % NS if kind != "fin" else 0)
        nsup = ntail // KU
        for t in range(ntail):
            S = t // KU
            rem = nsup - 1 - S
            wait = max(0, min(NSS - 3, rem - 1)) * W1 if rem >= 1 else None
            stage(t % NS, swapped, wait, rem >= NSS - 1, t < ntail - 1, t % KU == 0)
        a("s_nop 7")
        a("s_nop 1")

    def acc(j, i, r):
        return ACC + (j * MI + i) * 4 + r

    if kind == "qh":
        a("s_cmp_eq_u32 s50, 2")
        a(f"s_cbranch_scc1 L_{name}_vpath")
        mainloop(True, "a")
        a("v_and_b32 v1, 15, v0")
        a(f"s_lshl_b32 s47, s49, {WSH}")
        a("s_add_u32 s47, s47, s37")
        a("v_add_u32 v1, s47, v1")
        a("s_cmp_eq_u32 s50, 0")
        a(f"s_cselect_b32 s63, 0x{fbits(QSCALE):08x}, 1.0")
        a("s_lshl_b32 s56, s50, 21")
        a("s_lshl_b32 s57, s33, 16")
        a("s_add_u32 s56, s56, s57")
        a("v_lshlrev_b32 v2, 4, v1")
        a("v_lshrrev_b32 v3, 5, v0")
        a("v_lshl_add_u32 v2, v3, 15, v2")
        a("v_bfe_u32 v3, v0, 4, 1")
        a("v_lshl_add_u32 v2, v3, 3, v2")
        a("s_lshl_b32 s57, s50, 18")
        a("s_lshl_b32 s58, s33, 13")
        a("s_add_u32 s57, s57, s58")
        a(f"s_add_u32 s57, s57, {Q2_OFF}")
        a("v_lshlrev_b32 v3, 2, v1")
        for i in range(MI):
            for r in range(4):
                a(f"v_mul_f32 v{acc(0, i, r)}, s63, v{acc(0, i, r)}")
            a(f"v_mul_f32 v{acc(1, i, 0)}, s63, v{acc(1, i, 0)}")
            a(f"v_mul_f32 v{acc(1, i, 1)}, s63, v{acc(1, i, 1)}")
            a(f"v_cvt_pk_bf16_f32 v{8 + 4 * i}, v{acc(0, i, 0)}, v{acc(0, i, 1)}")
            a(f"v_cvt_pk_bf16_f32 v{9 + 4 * i}, v{acc(0, i, 2)}, v{acc(0, i, 3)}")
            a(f"v_cvt_pk_bf16_f32 v{10 + 4 * i}, v{acc(1, i, 0)}, v{acc(1, i, 1)}")
        for i in range(MI):
            a(f"buffer_store_dwordx2 {vr(8 + 4 * i, 2)}, v2, s[16:19], s56 offen offset:{256 * i}")
        a("v_cmp_gt_u32 vcc, 16, v0")
        a("s_and_saveexec_b64 s[58:59], vcc")
        for i in range(MI):
            a(f"buffer_store_dword v{10 + 4 * i}, v3, s[16:19], s57 offen offset:{64 * i}")
        a("s_mov_b64 exec, s[58:59]")
        a(f"s_branch L_{name}_done")
        a.label(f"L_{name}_vpath")
        mainloop(False, "b")
        a("v_bfe_u32 v1, v0, 4, 1")
        a("v_lshlrev_b32 v1, 3, v1")
        a("v_bfe_u32 v2, v0, 5, 1")
        a("v_lshl_add_u32 v1, v2, 2, v1")
        a(f"s_lshl_b32 s47, s49, {WSH}")
        a("s_add_u32 s47, s47, s37")
        a("v_add_u32 v1, s47, v1")
        a("v_lshlrev_b32 v1, 1, v1")
        a("v_and_b32 v2, 15, v0")
        a("v_lshl_add_u32 v1, v2, 12, v1")
        a("s_mul_i32 s56, s33, 73728")
        a(f"s_add_u32 s56, s56, {VT_OFF}")
        a("s_add_u32 s57, s56, 65536")
        for j in range(2):
            for i in range(MI):
                a(f"v_cvt_pk_bf16_f32 v{8 + 8 * j + 2 * i}, v{acc(j, i, 0)}, v{acc(j, i, 1)}")
                a(f"v_cvt_pk_bf16_f32 v{9 + 8 * j + 2 * i}, v{acc(j, i, 2)}, v{acc(j, i, 3)}")
        for i in range(MI):
            a(f"buffer_store_dwordx2 {vr(8 + 2 * i, 2)}, v1, s[16:19], s56 offen offset:{32 * i}")
        a("v_cmp_gt_u32 vcc, 2, v2")
        a("s_and_saveexec_b64 s[58:59], vcc")
        for i in range(MI):
            a(f"buffer_store_dwordx2 {vr(16 + 2 * i, 2)}, v1, s[16:19], s57 offen offset:{32 * i}")
        a("s_mov_b64 exec, s[58:59]")
        a.label(f"L_{name}_done")
    elif kind == "glu":
        mainloop(True, "a")
        PIT = HW * 2 + 16
        a("s_barrier")
        a("v_and_b32 v1, 15, v0")
        a(f"s_lshl_b32 s47, s49, {WSH}")
        a("v_add_u32 v1, s47, v1")
        a(f"v_mul_u32_u24 v1, {PIT}, v1")
        a("v_lshrrev_b32 v2, 4, v0")
        a("v_lshl_add_u32 v1, v2, 3, v1")
        a("s_mul_i32 s56, s50, 96")
        a("v_add_u32 v1, s56, v1")
        a("s_mov_b32 s57, 0xffff0000")
        for i in range(MI):
            for jj in range(3):
                t = 8 + (jj & 1) * 16
                a(f"v_cvt_pk_bf16_f32 v{t}, v{acc(jj, i, 0)}, v{acc(jj, i, 1)}")
                a(f"v_cvt_pk_bf16_f32 v{t + 1}, v{acc(jj, i, 2)}, v{acc(jj, i, 3)}")
                a(f"v_cvt_pk_bf16_f32 v{t + 2}, v{acc(jj + 3, i, 0)}, v{acc(jj + 3, i, 1)}")
                a(f"v_cvt_pk_bf16_f32 v{t + 3}, v{acc(jj + 3, i, 2)}, v{acc(jj + 3, i, 3)}")
                a(f"v_lshlrev_b32 v{t + 4}, 16, v{t}")
                a(f"v_and_b32 v{t + 5}, s57, v{t}")
                a(f"v_lshlrev_b32 v{t + 6}, 16, v{t + 1}")
                a(f"v_and_b32 v{t + 7}, s57, v{t + 1}")
                a(f"v_lshlrev_b32 v{t + 8}, 16, v{t + 2}")
                a(f"v_and_b32 v{t + 9}, s57, v{t + 2}")
                a(f"v_lshlrev_b32 v{t + 10}, 16, v{t + 3}")
                a(f"v_and_b32 v{t + 11}, s57, v{t + 3}")
                for r in range(4):
                    a(f"v_mul_f32 v{t + 4 + r}, v{t + 4 + r}, v{t + 8 + r}")
                a(f"v_cvt_pk_bf16_f32 v{t + 12}, v{t + 4}, v{t + 5}")
                a(f"v_cvt_pk_bf16_f32 v{t + 13}, v{t + 6}, v{t + 7}")
                a(f"ds_write_b64 v1, {vr(t + 12, 2)} offset:{i * 16 * PIT + jj * 32}")
        a("s_waitcnt lgkmcnt(0)")
        a("s_barrier")
        NT = 64 * NWAVE
        NQ = BM * CH // NT
        a("s_lshl_b32 s47, s36, 6")
        a("v_add_u32 v1, s47, v0")
        a(f"s_add_u32 s56, s40, {H_OFF}")
        a("s_mul_i32 s57, s37, 9216")
        a("s_add_u32 s56, s56, s57")
        a("s_mov_b32 s57, 9216")
        a("s_mov_b32 s58, 0x38e38e39")
        for q in range(NQ):
            a(f"v_add_u32 v2, {q * NT}, v1")
            a("v_mul_hi_u32 v3, v2, s58")
            a("v_lshrrev_b32 v3, 2, v3")
            a(f"v_mul_u32_u24 v4, {CH}, v3")
            a("v_sub_u32 v4, v2, v4")
            a(f"v_mul_u32_u24 v5, {PIT}, v3")
            a("v_lshl_add_u32 v5, v4, 4, v5")
            a(f"ds_read_b128 {vr(72 + 4 * q, 4)}, v5")
            a("v_mul_lo_u32 v3, v3, s57")
            a(f"v_lshl_add_u32 v{40 + q}, v4, 4, v3")
        for q in range(NQ):
            a(f"s_waitcnt lgkmcnt({NQ - 1 - q})")
            a(f"buffer_store_dwordx4 {vr(72 + 4 * q, 4)}, v{40 + q}, s[16:19], s56 offen")
    elif kind == "fin":
        mainloop(True, "a")
        a("v_and_b32 v1, 15, v0")
        a(f"s_lshl_b32 s47, s49, {WSH}")
        a("s_add_u32 s47, s47, s37")
        a("v_add_u32 v1, s47, v1")
        a("v_mul_u32_u24 v1, 2304, v1")
        a("v_lshrrev_b32 v2, 4, v0")
        a("v_lshl_add_u32 v1, v2, 4, v1")
        a("s_mul_i32 s56, s50, 192")
        a("s_lshl_b32 s57, s40, 1")
        a("s_add_u32 s56, s56, s57")
        a(f"s_mul_i32 s57, s34, {P_STRIDE}")
        a("s_add_u32 s56, s56, s57")
        a(f"s_add_u32 s56, s56, {P_OFF}")
        a("v_add_u32 v1, s56, v1")
        for i in range(MI):
            a(f"s_mov_b32 s58, {i * 16 * 2304}")
            for j in range(NJ):
                a(f"buffer_store_dwordx4 {vr(acc(j, i, 0), 4)}, v1, s[16:19], s58 offen offset:{(j // NJH) * HW * 4 + (j % NJH) * 64}")


    else:
        a(f"s_load_dwordx2 s[30:31], s[0:1], {ARG_OUT}")
        mainloop(True, "a")
        a("v_lshrrev_b32 v3, 4, v0")
        a("v_mul_u32_u24 v4, 1152, v1")
        a("v_lshl_add_u32 v4, v3, 3, v4")
        a("s_mul_i32 s59, s50, 96")
        a("s_add_u32 s59, s59, s40")
        a("s_waitcnt lgkmcnt(0)")
        make_srd(a, 20, 30, None, 2048 * 1152)
        a("s_mov_b32 s57, 0xffff0000")
        for i in range(MI):
            for j in range(NJ):
                PB = 104 + (i * NJ + j) * 16
                for r in range(4):
                    b0 = PB + r
                    a(f"v_add_f32 v{b0}, v{b0}, v{b0 + 4}")
                    a(f"v_add_f32 v{b0 + 8}, v{b0 + 8}, v{b0 + 12}")
                    a(f"v_add_f32 v{b0}, v{b0}, v{b0 + 8}")
                    a(f"v_cvt_pk_bf16_f32 v8, v{b0}, v{acc(j, i, r)}")
                    a("v_lshlrev_b32 v9, 16, v8")
                    a("v_and_b32 v8, s57, v8")
                    a(f"v_mul_f32 v8, v8, v{100 + 2 * i}")
                    a(f"v_mul_f32 v9, v9, v{101 + 2 * i}")
                    a("v_cvt_pk_bf16_f32 v8, v8, v9")
                    a("v_lshlrev_b32 v9, 16, v8")
                    a("v_and_b32 v8, s57, v8")
                    a(f"v_add_f32 v{b0}, v8, v9")
                a(f"v_cvt_pk_bf16_f32 v{PB + 4}, v{PB}, v{PB + 1}")
                a(f"v_cvt_pk_bf16_f32 v{PB + 5}, v{PB + 2}, v{PB + 3}")
                a(f"s_add_u32 s58, s59, {i * 16 * 1152}")
                a(f"buffer_store_dwordx2 {vr(PB + 4, 2)}, v4, s[20:23], s58 offen offset:{j * 32}")


LDS_DUMMY = 143360


def wave_setup(a):
    a("v_lshrrev_b32 v1, 6, v0")
    a("v_and_b32 v0, 63, v0")
    a("s_nop 0")
    a("v_readfirstlane_b32 s36, v1")


def gate_code4(a, name):
    a(f"s_load_dwordx2 s[28:29], s[0:1], {ARG_GW}")
    a("s_lshl_b32 s38, s2, 3")
    a("s_lshl_b32 s39, s49, 2")
    a("s_add_u32 s38, s38, s39")
    a("s_mul_i32 s39, s38, 1152")
    a("s_waitcnt lgkmcnt(0)")
    make_srd(a, 12, 28, None, 1152)
    a("v_lshlrev_b32 v1, 3, v0")
    a("s_mov_b32 s57, 0xffff0000")
    a("v_cmp_gt_u32 s[40:41], 16, v0")
    a("s_mov_b64 s[42:43], exec")
    for c in range(3):
        if c == 2:
            a("s_mov_b64 exec, s[40:41]")
        a(f"buffer_load_dwordx2 {vr(64 + 2 * c, 2)}, v1, s[12:15], 0 offen offset:{512 * c}")
        for t in range(4):
            a(f"s_add_u32 s47, s39, {1152 * t}")
            a(f"buffer_load_dwordx2 {vr(70 + 6 * t + 2 * c, 2)}, v1, s[4:7], s47 offen offset:{512 * c}")
        if c == 2:
            a("s_mov_b64 exec, s[42:43]")
    for t in range(4):
        a(f"v_mov_b32 v{100 + t}, 0")
    a("s_waitcnt vmcnt(0)")
    for c in range(3):
        if c == 2:
            a("s_mov_b64 exec, s[40:41]")
        for h in range(2):
            gr = 64 + 2 * c + h
            a(f"v_lshlrev_b32 v110, 16, v{gr}")
            a(f"v_and_b32 v111, s57, v{gr}")
            for t in range(4):
                xr = 70 + 6 * t + 2 * c + h
                a(f"v_lshlrev_b32 v112, 16, v{xr}")
                a(f"v_and_b32 v113, s57, v{xr}")
                a("v_mul_f32 v112, v112, v110")
                a("v_mul_f32 v113, v113, v111")
                a("v_cvt_pk_bf16_f32 v112, v112, v113")
                a("v_lshlrev_b32 v113, 16, v112")
                a("v_and_b32 v112, s57, v112")
                a(f"v_add_f32 v{100 + t}, v{100 + t}, v113")
                a(f"v_add_f32 v{100 + t}, v{100 + t}, v112")
        if c == 2:
            a("s_mov_b64 exec, s[42:43]")
    for m in (1, 2, 4, 8, 16):
        for t in range(4):
            a(f"ds_swizzle_b32 v{104 + t}, v{100 + t} offset:0x{(m << 10) | 0x1f:04x}")
        a("s_waitcnt lgkmcnt(0)")
        for t in range(4):
            a(f"v_add_f32 v{100 + t}, v{100 + t}, v{104 + t}")
    for t in range(4):
        a(f"v_mov_b32 v{104 + t}, v{100 + t}")
    a("s_nop 1")
    for t in range(4):
        a(f"v_permlane32_swap_b32 v{100 + t}, v{104 + t}")
    a("s_nop 1")
    for t in range(4):
        z, o = 100 + t, 120 + 2 * t
        a(f"v_add_f32 v{z}, v{z}, v{104 + t}")
        a(f"v_cvt_pk_bf16_f32 v{z}, v{z}, v{z}")
        a(f"v_and_b32 v{z}, s57, v{z}")
        a(f"v_mul_f32 v{z}, 0xbfb8aa3b, v{z}")
        a(f"v_exp_f32 v{z}, v{z}")
        a("s_nop 0")
        a(f"v_add_f32 v{z}, 1.0, v{z}")
        a(f"v_rcp_f32 v{z}, v{z}")
        a("s_nop 0")
        a(f"v_cvt_pk_bf16_f32 v{z}, v{z}, v{z}")
        a(f"v_and_b32 v{o}, s57, v{z}")
        a(f"v_sub_f32 v{o + 1}, 1.0, v{o}")
        a(f"v_cvt_pk_bf16_f32 v{o + 1}, v{o + 1}, v{o + 1}")
        a(f"v_and_b32 v{o + 1}, s57, v{o + 1}")
    a("s_lshl_b32 s38, s38, 3")
    a(f"s_add_u32 s38, s38, {G_OFF}")
    a("v_mov_b32 v1, 0")
    a("v_cmp_eq_u32 vcc, 0, v0")
    a("s_and_saveexec_b64 s[42:43], vcc")
    a("buffer_store_dwordx4 v[120:123], v1, s[16:19], s38 offen")
    a("buffer_store_dwordx4 v[124:127], v1, s[16:19], s38 offen offset:16")
    a("s_mov_b64 exec, s[42:43]")


K1_STAGE = 16384 + 2 * 9216 + 6144
K1_NS = 4
K1_LDS = K1_NS * K1_STAGE


def gen_k1(a, name):
    MI, NJ = 8, 6
    STAGE, NS = K1_STAGE, K1_NS
    XB, WG_OFF, WU_OFF, WQ_OFF = 16384, 16384, 16384 + 9216, 16384 + 18432
    kernel_begin(a, name)
    a("s_cmp_ge_u32 s2, 256")
    a(f"s_cbranch_scc1 L_{name}_end")
    a(f"s_load_dwordx4 s[24:27], s[0:1], {ARG_X}")
    a(f"s_load_dwordx4 s[28:31], s[0:1], {ARG_WG}")
    a(f"s_load_dwordx2 s[52:53], s[0:1], {ARG_WD}")
    a(f"s_load_dwordx2 s[54:55], s[0:1], {ARG_WO}")
    a(f"s_load_dwordx2 s[60:61], s[0:1], {ARG_WS}")
    a("v_lshlrev_b32 v1, 4, v0")
    a("s_lshl_b32 s33, s2, 13")
    a("s_waitcnt lgkmcnt(0)")
    make_srd(a, 4, 24, None, 2048 * 1152)
    make_srd(a, 8, 28, None, 576 * 9216)
    make_srd(a, 12, 30, None, 576 * 9216)
    make_srd(a, 20, 26, None, 576 * 3456)
    make_srd(a, 16, 60, None, WS_SIZE)
    a("buffer_load_dword v15, v1, s[4:7], s33 offen")
    a("buffer_load_dword v15, v1, s[20:23], s33 offen")
    a("buffer_load_dword v15, v1, s[8:11], s33 offen")
    a("buffer_load_dword v15, v1, s[12:15], s33 offen")
    a(f"s_add_u32 s34, s33, {256 * 8192}")
    a("buffer_load_dword v15, v1, s[4:7], s34 offen")
    a("buffer_load_dword v15, v1, s[8:11], s34 offen")
    a("buffer_load_dword v15, v1, s[12:15], s34 offen")
    a(f"s_add_u32 s34, s33, {512 * 8192}")
    a("buffer_load_dword v15, v1, s[8:11], s34 offen")
    a("buffer_load_dword v15, v1, s[12:15], s34 offen")
    wave_setup(a)
    a("s_and_b32 s33, s2, 7")
    a("s_lshl_b32 s33, s33, 2")
    a("s_lshr_b32 s34, s2, 3")
    a("s_and_b32 s32, s34, 7")
    a("s_lshr_b32 s34, s34, 3")
    a("s_add_u32 s33, s33, s34")
    a("s_lshl_b32 s37, s32, 8")
    a("s_and_b32 s49, s36, 1")
    a("s_lshr_b32 s50, s36, 1")
    SRD0, SOFF0, SSTR0, SM00 = 64, 84, 89, 94
    for e in range(5):
        sd, vo = SRD0 + 4 * e, 2 + e
        a(f"s_add_u32 s47, s36, {e * 8}")
        a(f"s_mov_b32 s{SOFF0 + e}, 0")
        a(f"s_lshl_b32 s{SM00 + e}, s47, 10")
        if e < 2:
            for q in range(4):
                a(f"s_mov_b32 s{sd + q}, s{4 + q}")
            a(f"s_mov_b32 s{SSTR0 + e}, 64")
            a("v_lshrrev_b32 v8, 2, v0")
            a("s_lshl_b32 s48, s47, 4")
            a("s_add_u32 s48, s48, s37")
            a("v_add_u32 v8, s48, v8")
            a(f"v_mul_u32_u24 v{vo}, 1152, v8")
            a("v_and_b32 v9, 3, v0")
            a("v_lshrrev_b32 v10, 5, v0")
            a("v_lshlrev_b32 v10, 1, v10")
            a("v_xor_b32 v9, v9, v10")
            a(f"v_lshl_add_u32 v{vo}, v9, 4, v{vo}")
        else:
            a("s_cmp_lt_u32 s47, 34")
            a(f"s_cbranch_scc0 L_{name}_q{e}")
            a("s_sub_u32 s47, s47, 16")
            a("s_sub_u32 s48, s47, 9")
            a("s_cmp_lt_u32 s47, 9")
            for q in range(4):
                a(f"s_cselect_b32 s{sd + q}, s{8 + q}, s{12 + q}")
            a("s_cselect_b32 s47, s47, s48")
            a(f"s_mov_b32 s{SSTR0 + e}, {32 * 9216}")
            a("s_lshl_b32 s47, s47, 6")
            a("v_add_u32 v8, s47, v0")
            a("v_mul_u32_u24 v9, 0xe39, v8")
            a("v_lshrrev_b32 v9, 16, v9")
            a("v_mul_u32_u24 v10, 18, v9")
            a("v_sub_u32 v10, v8, v10")
            a("v_bfe_u32 v11, v9, 3, 1")
            a("v_lshlrev_b32 v11, 3, v11")
            a("v_xor_b32 v11, v10, v11")
            a("v_cmp_gt_u32 vcc, 16, v10")
            a("s_nop 1")
            a("v_cndmask_b32 v10, v10, v11, vcc")
            a("v_mul_u32_u24 v9, 9216, v9")
            a("v_lshl_add_u32 v9, v10, 4, v9")
            a("s_mul_i32 s48, s33, 288")
            a(f"v_add_u32 v{vo}, s48, v9")
            a(f"s_branch L_{name}_d{e}")
            a.label(f"L_{name}_q{e}")
            a("s_sub_u32 s47, s47, 34")
            for q in range(4):
                a(f"s_mov_b32 s{sd + q}, s{20 + q}")
            a(f"s_mov_b32 s{SSTR0 + e}, {32 * 3456}")
            a("s_lshl_b32 s47, s47, 6")
            a("v_add_u32 v8, s47, v0")
            a("v_mul_u32_u24 v9, 0xaab, v8")
            a("v_lshrrev_b32 v9, 15, v9")
            a("v_mul_u32_u24 v10, 12, v9")
            a("v_sub_u32 v10, v8, v10")
            a("v_bfe_u32 v11, v9, 3, 1")
            a("v_lshlrev_b32 v11, 1, v11")
            a("v_xor_b32 v10, v10, v11")
            a("v_mul_u32_u24 v9, 3456, v9")
            a("v_lshrrev_b32 v11, 2, v10")
            a("v_mul_u32_u24 v11, 1152, v11")
            a("v_and_b32 v10, 3, v10")
            a("v_add_u32 v9, v9, v11")
            a("v_lshl_add_u32 v9, v10, 4, v9")
            a("s_mul_i32 s48, s33, 36")
            a(f"v_add_u32 v{vo}, s48, v9")
            a.label(f"L_{name}_d{e}")

    def issue_dma(slot, only=None):
        buf = slot * STAGE
        for e in range(5):
            if only is not None and e != only:
                continue
            a(f"s_add_u32 m0, s{SM00 + e}, {buf}")
            a("s_nop 0")
            a(f"buffer_load_dwordx4 v{2 + e}, {sr(SRD0 + 4 * e, 4)}, s{SOFF0 + e} offen lds")
            a(f"s_add_u32 s{SOFF0 + e}, s{SOFF0 + e}, s{SSTR0 + e}")

    for q in range(NS - 1):
        issue_dma(q)
    make_srd(a, 40, 52, None, 4608 * 1152)
    a("s_lshl_b32 s48, s2, 13")
    a("s_lshl_b32 s47, s36, 10")
    a("v_lshl_add_u32 v8, v0, 4, s47")
    a("buffer_load_dword v14, v8, s[40:43], s48 offen")
    a(f"s_add_u32 s47, s48, {256 * 8192}")
    a("buffer_load_dword v14, v8, s[40:43], s47 offen")
    a(f"s_add_u32 s47, s48, {512 * 8192}")
    a("buffer_load_dword v14, v8, s[40:43], s47 offen")
    make_srd(a, 40, 54, None, 576 * 1152)
    a("buffer_load_dword v14, v8, s[40:43], s48 offen")
    NWARM = 4
    a("v_and_b32 v9, 15, v0")
    a("s_lshl_b32 s47, s49, 7")
    a("v_add_u32 v9, s47, v9")
    a("v_lshlrev_b32 v9, 6, v9")
    a("v_lshrrev_b32 v10, 4, v0")
    a("v_bfe_u32 v11, v0, 3, 1")
    a("v_lshlrev_b32 v11, 1, v11")
    a("v_xor_b32 v10, v10, v11")
    a("v_lshl_add_u32 v7, v10, 4, v9")
    a(f"v_add_u32 v8, {2 * STAGE}, v7")
    ACC = 64
    WF = 16
    XB4 = [40, 44, 48, 10]
    WA = 52
    for i in range(NJ * MI * 4):
        a(f"v_mov_b32 v{ACC + i}, 0")

    def w_addr_setup(isq):
        RB = 192 if isq else 288
        a("v_lshrrev_b32 v9, 4, v0")
        a("v_bfe_u32 v10, v0, 2, 2")
        a("v_lshl_add_u32 v10, v9, 3, v10")
        a(f"v_mul_u32_u24 v10, {RB}, v10")
        a("v_and_b32 v11, 1, v0")
        a("v_lshl_add_u32 v10, v11, 3, v10")
        a("v_and_b32 v9, 1, v9")
        a(f"v_lshlrev_b32 v9, {1 if isq else 3}, v9")
        a("v_bfe_u32 v11, v0, 1, 1")
        if not isq:
            a("s_mul_i32 s47, s50, 6")
            a("v_add_u32 v11, s47, v11")
        for j in range(6):
            jj = j if isq else j % 3
            base = WQ_OFF if isq else (WG_OFF if j < 3 else WU_OFF)
            a(f"v_add_u32 v12, {2 * jj}, v11")
            a("v_xor_b32 v13, v12, v9")
            if not isq:
                a("v_cmp_gt_u32 vcc, 16, v12")
                a("s_nop 1")
                a("v_cndmask_b32 v13, v12, v13, vcc")
            a(f"v_lshl_add_u32 v{WA + j}, v13, 4, v10")
            a(f"v_add_u32 v{WA + j}, {base}, v{WA + j}")
            a(f"v_add_u32 v{WA + 6 + j}, {2 * STAGE}, v{WA + j}")

    def rd_x(slot, i):
        buf = (slot % 2) * STAGE
        a(f"ds_read_b128 {vr(XB4[i % 4], 4)}, {'v7' if slot < 2 else 'v8'} offset:{buf + i * 1024}")

    def rd_w(slot, j, RB):
        buf = (slot % 2) * STAGE
        wa = WA + j + (0 if slot < 2 else 6)
        a(f"ds_read_b64_tr_b16 {vr(WF + 4 * j, 2)}, v{wa} offset:{buf}")
        a(f"ds_read_b64_tr_b16 {vr(WF + 4 * j + 2, 2)}, v{wa} offset:{buf + 4 * RB}")

    def stage(slot, isq, wait, prefetch, nxt):
        RB = 192 if isq else 288
        nslot = (slot + 1) % NS
        if wait is not None:
            a(f"s_waitcnt vmcnt({wait})")
            a("s_barrier")
        for i in range(MI):
            if i >= 3:
                young = 3 if nxt else min(3, MI - 1 - i)
                a(f"s_waitcnt lgkmcnt({young})")
            for j in range(NJ):
                if i == 0:
                    a(f"s_waitcnt lgkmcnt({2 * (5 - j) + 1})")
                d = vr(ACC + (j * MI + i) * 4, 4)
                xw = vr(XB4[i % 4], 4)
                ww = vr(WF + 4 * j, 4)
                if 'k1nomfma' in ABL:
                    pass
                elif isq and j >= 4:
                    a(f"v_mfma_f32_16x16x32_bf16 {d}, {xw}, {ww}, {d}")
                else:
                    a(f"v_mfma_f32_16x16x32_bf16 {d}, {ww}, {xw}, {d}")
                if i == MI - 1 and nxt:
                    rd_w(nslot, j, RB)
            if prefetch and i < 5:
                issue_dma((slot + NS - 1) % NS, i)
            if i + 4 < MI:
                rd_x(slot, i + 4)
            elif nxt:
                rd_x(nslot, i + 4 - MI)

    def mainloop(isq, tag):
        RB = 192 if isq else 288
        a(f"s_waitcnt vmcnt({(NS - 2) * 5 + NWARM})")
        a("s_barrier")
        rd_x(0, 0)
        rd_x(0, 1)
        rd_x(0, 2)
        for j in range(NJ):
            rd_w(0, j, RB)
        rd_x(0, 3)
        a(f"s_mov_b32 s62, {1 if 'k1short' in ABL else 3}")
        a.label(f"L_{name}_loop{tag}")
        for slot in range(NS):
            stage(slot, isq, (NS - 3) * 5, True, True)
        a("s_sub_u32 s62, s62, 1")
        a("s_cmp_lg_u32 s62, 0")
        a(f"s_cbranch_scc1 L_{name}_loop{tag}")
        ntail = 6
        for t in range(ntail):
            rem = ntail - 1 - t
            wait = max(0, min(NS - 3, rem - 1)) * 5 if rem >= 1 else None
            stage(t % NS, isq, wait, rem >= NS - 1, rem >= 1)
        a("s_nop 7")
        a("s_nop 1")
        if 'k1noepi' in ABL:
            a("s_endpgm")

    def acc(j, i, r):
        return ACC + (j * MI + i) * 4 + r

    PIT = 288 + 16
    if 'noprio' not in ABL:
        a("s_cmp_lt_u32 s36, 4")
        a(f"s_cbranch_scc1 L_{name}_np")
        a("s_setprio 1")
        a.label(f"L_{name}_np")
    a("s_cmp_eq_u32 s50, 3")
    a(f"s_cbranch_scc1 L_{name}_qpath")
    w_addr_setup(False)
    mainloop(False, "g")
    a("s_barrier")
    a("v_and_b32 v1, 15, v0")
    a("s_lshl_b32 s47, s49, 7")
    a("v_add_u32 v1, s47, v1")
    a(f"v_mul_u32_u24 v1, {PIT}, v1")
    a("v_lshrrev_b32 v2, 4, v0")
    a("v_lshl_add_u32 v1, v2, 3, v1")
    a("s_mul_i32 s56, s50, 96")
    a("v_add_u32 v1, s56, v1")
    a("s_mov_b32 s57, 0xffff0000")
    for i in range(MI):
        for jj in range(3):
            t = 16 + (jj & 1) * 16
            a(f"v_cvt_pk_bf16_f32 v{t}, v{acc(jj, i, 0)}, v{acc(jj, i, 1)}")
            a(f"v_cvt_pk_bf16_f32 v{t + 1}, v{acc(jj, i, 2)}, v{acc(jj, i, 3)}")
            a(f"v_cvt_pk_bf16_f32 v{t + 2}, v{acc(jj + 3, i, 0)}, v{acc(jj + 3, i, 1)}")
            a(f"v_cvt_pk_bf16_f32 v{t + 3}, v{acc(jj + 3, i, 2)}, v{acc(jj + 3, i, 3)}")
            a(f"v_lshlrev_b32 v{t + 4}, 16, v{t}")
            a(f"v_and_b32 v{t + 5}, s57, v{t}")
            a(f"v_lshlrev_b32 v{t + 6}, 16, v{t + 1}")
            a(f"v_and_b32 v{t + 7}, s57, v{t + 1}")
            a(f"v_lshlrev_b32 v{t + 8}, 16, v{t + 2}")
            a(f"v_and_b32 v{t + 9}, s57, v{t + 2}")
            a(f"v_lshlrev_b32 v{t + 10}, 16, v{t + 3}")
            a(f"v_and_b32 v{t + 11}, s57, v{t + 3}")
            for r in range(4):
                a(f"v_mul_f32 v{t + 4 + r}, v{t + 4 + r}, v{t + 8 + r}")
            a(f"v_cvt_pk_bf16_f32 v{t + 12}, v{t + 4}, v{t + 5}")
            a(f"v_cvt_pk_bf16_f32 v{t + 13}, v{t + 6}, v{t + 7}")
            a(f"ds_write_b64 v1, {vr(t + 12, 2)} offset:{i * 16 * PIT + jj * 32}")
    a(f"s_branch L_{name}_hstore")
    a.label(f"L_{name}_qpath")
    w_addr_setup(True)
    mainloop(True, "q")
    a("s_barrier")
    a("v_and_b32 v1, 15, v0")
    a("s_lshl_b32 s47, s49, 7")
    a("s_add_u32 s47, s47, s37")
    a("v_add_u32 v1, s47, v1")
    a("v_lshlrev_b32 v2, 4, v1")
    a("v_lshrrev_b32 v3, 5, v0")
    a("v_lshl_add_u32 v2, v3, 15, v2")
    a("v_bfe_u32 v3, v0, 4, 1")
    a("v_lshl_add_u32 v2, v3, 3, v2")
    a("v_lshlrev_b32 v3, 2, v1")
    a(f"s_mov_b32 s63, 0x{fbits(QSCALE):08x}")
    a("v_cmp_gt_u32 vcc, 16, v0")
    for sel in range(2):
        a("s_lshl_b32 s56, s33, 16")
        a(f"s_add_u32 s56, s56, {sel * 0x200000}")
        a("s_lshl_b32 s57, s33, 13")
        a(f"s_add_u32 s57, s57, {Q2_OFF + sel * 0x40000}")
        j0 = 2 * sel
        for i in range(MI):
            if sel == 0:
                for r in range(4):
                    a(f"v_mul_f32 v{acc(0, i, r)}, s63, v{acc(0, i, r)}")
                a(f"v_mul_f32 v{acc(1, i, 0)}, s63, v{acc(1, i, 0)}")
                a(f"v_mul_f32 v{acc(1, i, 1)}, s63, v{acc(1, i, 1)}")
            a(f"v_cvt_pk_bf16_f32 v{16 + 4 * i}, v{acc(j0, i, 0)}, v{acc(j0, i, 1)}")
            a(f"v_cvt_pk_bf16_f32 v{17 + 4 * i}, v{acc(j0, i, 2)}, v{acc(j0, i, 3)}")
            a(f"v_cvt_pk_bf16_f32 v{18 + 4 * i}, v{acc(j0 + 1, i, 0)}, v{acc(j0 + 1, i, 1)}")
        for i in range(MI):
            a(f"buffer_store_dwordx2 {vr(16 + 4 * i, 2)}, v2, s[16:19], s56 offen offset:{256 * i}")
        a("s_and_saveexec_b64 s[58:59], vcc")
        for i in range(MI):
            a(f"buffer_store_dword v{18 + 4 * i}, v3, s[16:19], s57 offen offset:{64 * i}")
        a("s_mov_b64 exec, s[58:59]")
        a("s_nop 1")
    a("v_bfe_u32 v1, v0, 4, 1")
    a("v_lshlrev_b32 v1, 3, v1")
    a("v_bfe_u32 v2, v0, 5, 1")
    a("v_lshl_add_u32 v1, v2, 2, v1")
    a("s_lshl_b32 s47, s49, 7")
    a("s_add_u32 s47, s47, s37")
    a("v_add_u32 v1, s47, v1")
    a("v_lshlrev_b32 v1, 1, v1")
    a("v_and_b32 v2, 15, v0")
    a("v_lshl_add_u32 v1, v2, 12, v1")
    a("s_mul_i32 s56, s33, 73728")
    a(f"s_add_u32 s56, s56, {VT_OFF}")
    a("s_add_u32 s57, s56, 65536")
    for j in range(2):
        for i in range(MI):
            a(f"v_cvt_pk_bf16_f32 v{16 + 16 * j + 2 * i}, v{acc(4 + j, i, 0)}, v{acc(4 + j, i, 1)}")
            a(f"v_cvt_pk_bf16_f32 v{17 + 16 * j + 2 * i}, v{acc(4 + j, i, 2)}, v{acc(4 + j, i, 3)}")
    for i in range(MI):
        a(f"buffer_store_dwordx2 {vr(16 + 2 * i, 2)}, v1, s[16:19], s56 offen offset:{32 * i}")
    a("v_cmp_gt_u32 vcc, 2, v2")
    a("s_and_saveexec_b64 s[58:59], vcc")
    for i in range(MI):
        a(f"buffer_store_dwordx2 {vr(32 + 2 * i, 2)}, v1, s[16:19], s57 offen offset:{32 * i}")
    a("s_mov_b64 exec, s[58:59]")
    gate_code4(a, name)
    a.label(f"L_{name}_hstore")
    a("s_waitcnt lgkmcnt(0)")
    a("s_barrier")
    NT, NQ = 512, 9
    a("s_lshl_b32 s47, s36, 6")
    a("v_add_u32 v1, s47, v0")
    a("s_mul_i32 s56, s33, 288")
    a(f"s_add_u32 s56, s56, {H_OFF}")
    a("s_mul_i32 s57, s37, 9216")
    a("s_add_u32 s56, s56, s57")
    a("s_mov_b32 s57, 9216")
    a("s_mov_b32 s58, 0x38e38e39")
    for q in range(NQ):
        a(f"v_add_u32 v2, {q * NT}, v1")
        a("v_mul_hi_u32 v3, v2, s58")
        a("v_lshrrev_b32 v3, 2, v3")
        a("v_mul_u32_u24 v4, 18, v3")
        a("v_sub_u32 v4, v2, v4")
        a(f"v_mul_u32_u24 v5, {PIT}, v3")
        a("v_lshl_add_u32 v5, v4, 4, v5")
        a(f"ds_read_b128 {vr(64 + 4 * q, 4)}, v5")
        a("v_mul_lo_u32 v3, v3, s57")
        a(f"v_lshl_add_u32 v{50 + q}, v4, 4, v3")
    for q in range(NQ):
        a(f"s_waitcnt lgkmcnt({NQ - 1 - q})")
        a(f"buffer_store_dwordx4 {vr(64 + 4 * q, 4)}, v{50 + q}, s[16:19], s56 offen")
    a.label(f"L_{name}_end")
    a("s_endpgm")
    kernel_desc(a, name, 256, 102)


B_V = 16384
B_VSTR = 1040
B_K2 = B_V + 19 * B_VSTR
B_BUF = B_K2 + 2048
K2_LDS = 81920


def attn_role(a, name):
    a(f"s_load_dwordx2 s[24:25], s[0:1], {ARG_WS}")
    a("s_and_b32 s32, s2, 31")
    a("s_lshr_b32 s33, s2, 5")
    a("v_lshlrev_b32 v1, 4, v0")
    a("s_waitcnt lgkmcnt(0)")
    make_srd(a, 4, 24, None, WS_SIZE)
    GO, GI, LO = 40, 46, 52
    for e in range(5):
        a(f"s_add_u32 s60, s36, {8 * e}")
        if e < 2:
            a("s_lshl_b32 s61, s32, 16")
            a(f"s_add_u32 s61, s61, {K16_OFF + e * 32768}")
            a("s_lshl_b32 s62, s36, 10")
            a(f"s_add_u32 s{GO + e}, s61, s62")
            a(f"s_mov_b32 s{GI + e}, 8192")
            a(f"s_add_u32 s{LO + e}, s62, {e * 8192}")
        elif e < 4:
            a("s_sub_u32 s60, s60, 16")
            a("s_mul_i32 s61, s32, 73728")
            a(f"s_add_u32 s61, s61, {VT_OFF}")
            a("s_lshl_b32 s62, s60, 12")
            a(f"s_add_u32 s{GO + e}, s61, s62")
            a(f"s_mov_b32 s{GI + e}, 1024")
            a(f"s_mul_i32 s{LO + e}, s60, {B_VSTR}")
            a(f"s_add_u32 s{LO + e}, s{LO + e}, {B_V}")
        else:
            a("s_mul_i32 s61, s32, 73728")
            a(f"s_add_u32 s61, s61, {VT_OFF + 16 * 4096}")
            a("s_lshl_b32 s62, s36, 12")
            a("s_add_u32 s61, s61, s62")
            a(f"s_mul_i32 s63, s36, {B_VSTR}")
            a(f"s_add_u32 s63, s63, {B_V + 16 * B_VSTR}")
            a("s_lshl_b32 s64, s32, 13")
            a(f"s_add_u32 s64, s64, {K2_OFF - 2048}")
            a("s_lshl_b32 s62, s36, 10")
            a("s_add_u32 s64, s64, s62")
            a(f"s_add_u32 s65, s62, {B_K2 - 2048}")
            a("s_cmp_lt_u32 s36, 2")
            a(f"s_cselect_b32 s{GO + e}, s61, s64")
            a(f"s_cselect_b32 s{LO + e}, s63, s65")
            a(f"s_cselect_b32 s{GI + e}, 1024, 2048") if False else None
            a("s_mov_b32 s66, 1024")
            a(f"s_cselect_b32 s{GI + e}, s66, 2048")
            a("s_cmp_lt_u32 s36, 4")
            a(f"s_cselect_b32 s{LO + e}, s{LO + e}, {K2_LDS + 2048}")

    def issue_chunk(buf_sgpr):
        for e in range(5):
            a(f"s_add_u32 m0, s{LO + e}, {buf_sgpr}")
            a("s_nop 0")
            a(f"buffer_load_dwordx4 v1, s[4:7], s{GO + e} offen lds")
            a(f"s_add_u32 s{GO + e}, s{GO + e}, s{GI + e}")

    a("s_setprio 2")
    QF1, QF2 = 8, 12
    a("v_and_b32 v2, 31, v0")
    a("s_lshl_b32 s60, s33, 8")
    a("s_lshl_b32 s61, s36, 5")
    a("s_add_u32 s60, s60, s61")
    a("v_add_u32 v2, s60, v2")
    a("v_lshrrev_b32 v3, 5, v0")
    a("v_lshlrev_b32 v4, 4, v2")
    a("v_lshl_add_u32 v4, v3, 15, v4")
    a("s_lshl_b32 s60, s32, 16")
    a(f"s_add_u32 s60, s60, {Q16_OFF}")
    a(f"buffer_load_dwordx4 {vr(QF1, 4)}, v4, s[4:7], s60 offen")
    a("v_lshlrev_b32 v4, 2, v2")
    a("s_lshl_b32 s60, s32, 13")
    a(f"s_add_u32 s60, s60, {Q2_OFF}")
    a(f"buffer_load_dword v{QF2}, v4, s[4:7], s60 offen")
    issue_chunk("0")
    issue_chunk(str(B_BUF))
    for r in range(1, 4):
        a(f"v_mov_b32 v{QF2 + r}, 0")
    a("v_mov_b32 v110, 0x3f803f80")
    a("v_mov_b32 v111, 0x3f803f80")
    a("s_and_b32 s60, s36, 1")
    a("s_lshl_b32 s60, s60, 9")
    a("s_lshr_b32 s61, s36, 1")
    a("s_and_b32 s61, s61, 1")
    a(f"s_mul_i32 s61, s61, {B_BUF}")
    a("s_add_u32 s60, s60, s61")
    a("v_lshlrev_b32 v4, 3, v0")
    a("v_add_u32 v4, s60, v4")
    a(f"v_add_u32 v4, {B_V + 18 * B_VSTR}, v4")
    a("ds_write_b64 v4, v[110:111]")
    a("v_and_b32 v4, 31, v0")
    a("v_lshlrev_b32 v5, 4, v4")
    a("v_lshl_add_u32 v5, v3, 13, v5")
    a("v_lshlrev_b32 v6, 2, v4")
    a(f"v_add_u32 v6, {B_K2}, v6")
    a("v_min_u32 v7, 18, v4")
    a(f"v_mul_u32_u24 v7, {B_VSTR}, v7")
    a("v_lshl_add_u32 v7, v3, 4, v7")
    a(f"v_add_u32 v7, {B_V}, v7")
    a(f"v_add_u32 v120, {B_BUF}, v5")
    a(f"v_add_u32 v121, {B_BUF}, v6")
    a(f"v_add_u32 v122, {B_BUF}, v7")
    KF, K2F, VF = 16, 20, 24
    SA, SB = 32, 48
    PF = 64
    OA = 72
    NEGM = 88
    VT1, VT2, VAL = 104, 105, 106
    for r in range(1, 4):
        a(f"v_mov_b32 v{K2F + r}, 0")
    for r in range(16):
        a(f"v_mov_b32 v{OA + r}, 0")
    for r in range(8):
        a(f"v_mov_b32 v{PF + r}, 0")
    a("s_waitcnt vmcnt(5) lgkmcnt(0)")
    a("v_cmp_gt_u32 vcc, 32, v0")
    a("s_nop 1")
    a(f"v_cndmask_b32 v{QF2}, 0, v{QF2}, vcc")
    a("s_barrier")

    def read_K(t):
        ka, k2a = ("v5", "v6") if t < 16 else ("v120", "v121")
        tt = t % 16
        a(f"ds_read_b128 {vr(KF, 4)}, {ka} offset:{tt * 512}")
        a(f"ds_read_b32 v{K2F}, {k2a} offset:{tt * 128}")

    def read_V(t):
        for b in range(2):
            a(f"ds_read_b128 {vr(VF + 4 * b, 4)}, v7 offset:{t * 64 + b * 32}")

    def tile_max_ops(S):
        mx = [f"v_max3_f32 v{VT1}, v{S}, v{S + 1}, v{S + 2}"]
        for k in range(6):
            mx.append(f"v_max3_f32 v{VT1}, v{S + 3 + 2 * k}, v{S + 4 + 2 * k}, v{VT1}")
        mx.append(f"v_max_f32 v{VT1}, v{S + 15}, v{VT1}")
        return mx

    def cross_half_max():
        a(f"v_mov_b32 v{VT2}, v{VT1}")
        a("s_nop 1")
        a(f"v_permlane32_swap_b32 v{VT1}, v{VT2}")
        a("s_nop 1")
        a(f"v_max_f32 v{VT1}, v{VT1}, v{VT2}")

    def pv_mfma(b):
        d = vr(OA, 16)
        return f"v_mfma_f32_32x32x16_bf16 {d}, {vr(VF + 4 * b, 4)}, {vr(PF + 4 * b, 4)}, {d}"

    def qk_mfma(S, n, c=None):
        d = vr(S, 16)
        if n:
            return f"v_mfma_f32_32x32x16_bf16 {d}, {vr(K2F, 4)}, {vr(QF2, 4)}, {d}"
        return f"v_mfma_f32_32x32x16_bf16 {d}, {vr(KF, 4)}, {vr(QF1, 4)}, {c if c else vr(NEGM, 16)}"

    rare = []

    def iteration(t):
        S, Sn = (SA, SB) if t % 2 == 0 else (SB, SA)
        mx = tile_max_ops(S)
        a("s_waitcnt lgkmcnt(2)")
        for k in range(8):
            if k % 4 == 0 and 'bnomfma' not in ABL:
                a(pv_mfma(k // 4))
            if 'bnomax' not in ABL:
                a(mx[k])
        if 'bnods' not in ABL:
            read_V(t)
        if 'bnomax' not in ABL:
            a(f"v_cmp_lt_f32 vcc, 0x41000000, v{VT1}")
            a(f"s_cbranch_vccnz L_{name}_rs{t}")
        a.label(f"L_{name}_ct{t}")
        rare.append((S, t))
        a("s_waitcnt lgkmcnt(2)")
        for k in range(16):
            if k % 8 == 0 and 'bnomfma' not in ABL:
                a(qk_mfma(Sn, k // 8))
            if 'bnoexp' not in ABL:
                a(f"v_exp_f32 v{S + k}, v{S + k}")
        if 'bnods' not in ABL:
            read_K(t + 2)
        for k in range(8):
            if 'bnocvt' not in ABL:
                a(f"v_cvt_pk_bf16_f32 v{PF + k}, v{S + 2 * k}, v{S + 2 * k + 1}")

    read_K(0)
    a("s_waitcnt lgkmcnt(0)")
    a(qk_mfma(SA, 0, "0"))
    a(qk_mfma(SA, 1))
    read_V(0)
    read_K(1)
    a("s_nop 15")
    for op in tile_max_ops(SA):
        a(op)
    cross_half_max()
    for k in range(16):
        a(f"v_sub_f32 v{SA + k}, v{SA + k}, v{VT1}")
    for r in range(16):
        a(f"v_sub_f32 v{NEGM + r}, 0, v{VT1}")
    a("s_mov_b32 s58, 0")
    a("s_mov_b32 s59, 0")
    a.label(f"L_{name}_loop")
    for t in range(16):
        iteration(t)
        if t == 1:
            a("s_barrier")
            a("s_cmp_eq_u32 s58, 0")
            a(f"s_cbranch_scc1 L_{name}_nf")
            a("s_cmp_eq_u32 s58, 3")
            a(f"s_cbranch_scc1 L_{name}_nf")
            issue_chunk("s59")
            a.label(f"L_{name}_nf")
        if t == 13:
            a("s_waitcnt vmcnt(0)")
            a("s_barrier")
    for (x, y) in (("v5", "v120"), ("v6", "v121"), ("v7", "v122")):
        a(f"v_swap_b32 {x}, {y}")
    a("s_and_b32 s59, s58, 1")
    a(f"s_mul_i32 s59, s59, {B_BUF}")
    a("s_add_u32 s58, s58, 1")
    a("s_cmp_lt_u32 s58, 4")
    a(f"s_cbranch_scc1 L_{name}_loop")
    a("s_waitcnt lgkmcnt(0)")
    a("s_nop 0")
    a(pv_mfma(0))
    a(pv_mfma(1))
    a(f"s_branch L_{name}_fin")
    for (S, t) in rare:
        a.label(f"L_{name}_rs{t}")
        a("s_nop 15")
        cross_half_max()
        a(f"v_max_f32 v{VT1}, 0, v{VT1}")
        a(f"v_sub_f32 v{VAL}, 0, v{VT1}")
        a(f"v_exp_f32 v{VAL}, v{VAL}")
        for k in range(16):
            a(f"v_sub_f32 v{S + k}, v{S + k}, v{VT1}")
        for r in range(16):
            a(f"v_sub_f32 v{NEGM + r}, v{NEGM + r}, v{VT1}")
        for r in range(12):
            a(f"v_mul_f32 v{OA + r}, v{OA + r}, v{VAL}")
        a("s_nop 1")
        a(f"s_branch L_{name}_ct{t}")
    a.label(f"L_{name}_fin")
    a("s_nop 15")
    a("s_nop 7")
    a(f"v_mov_b32 v{VT1}, v{OA + 10}")
    a(f"v_mov_b32 v{VT2}, v{OA + 10}")
    a("s_nop 1")
    a(f"v_permlane32_swap_b32 v{VT1}, v{VT2}")
    a("s_nop 1")
    a(f"v_rcp_f32 v{VT1}, v{VT1}")
    a("s_nop 0")
    for r in range(12):
        a(f"v_mul_f32 v{OA + r}, v{OA + r}, v{VT1}")
    for k in range(6):
        a(f"v_cvt_pk_bf16_f32 v{PF + k}, v{OA + 2 * k}, v{OA + 2 * k + 1}")
    a("v_mul_u32_u24 v4, 1152, v2")
    a("v_lshl_add_u32 v4, v3, 3, v4")
    a("s_mul_i32 s60, s32, 36")
    a(f"s_add_u32 s60, s60, {O_OFF}")
    a(f"buffer_store_dword v{PF}, v4, s[4:7], s60 offen")
    a(f"buffer_store_dword v{PF + 1}, v4, s[4:7], s60 offen offset:4")
    a(f"buffer_store_dword v{PF + 2}, v4, s[4:7], s60 offen offset:16")
    a(f"buffer_store_dword v{PF + 3}, v4, s[4:7], s60 offen offset:20")
    a("v_cmp_gt_u32 vcc, 32, v0")
    a("s_and_saveexec_b64 s[44:45], vcc")
    a(f"buffer_store_dword v{PF + 4}, v4, s[4:7], s60 offen offset:32")
    a("s_endpgm")


def gen_k2(a, name):
    kernel_begin(a, name)
    a(f"s_cmp_ge_u32 s2, {256 if 'attonly' in ABL else 256 + 192}")
    a(f"s_cbranch_scc1 L_{name}_end")
    wave_setup(a)
    a("s_cmp_lt_u32 s2, 256")
    a(f"s_cbranch_scc0 L_{name}_gemm")
    attn_role(a, name)
    a.label(f"L_{name}_gemm")
    gemm_phase(a, name, "fin")
    a.label(f"L_{name}_end")
    a("s_endpgm")
    kernel_desc(a, name, 128, 102)


def gen_k3(a, name):
    kernel_begin(a, name)
    a("s_cmp_ge_u32 s2, 192")
    a(f"s_cbranch_scc1 L_{name}_end")
    wave_setup(a)
    gemm_phase(a, name, "wo")
    a.label(f"L_{name}_end")
    a("s_endpgm")
    kernel_desc(a, name, 208, 102)


def gen_reduce(a, name):
    kernel_begin(a, name)
    a("s_cmp_ge_u32 s2, 512")
    a(f"s_cbranch_scc1 L_{name}_end")
    a(f"s_load_dwordx2 s[24:25], s[0:1], {ARG_WS}")
    a(f"s_load_dwordx2 s[26:27], s[0:1], {ARG_X}")
    a(f"s_load_dwordx2 s[28:29], s[0:1], {ARG_GW}")
    a(f"s_load_dwordx2 s[30:31], s[0:1], {ARG_OUT}")
    a("v_lshrrev_b32 v1, 6, v0")
    a("v_and_b32 v0, 63, v0")
    a("s_nop 0")
    a("v_readfirstlane_b32 s36, v1")
    a("s_lshl_b32 s37, s2, 2")
    a("s_add_u32 s37, s37, s36")
    a("s_waitcnt lgkmcnt(0)")
    make_srd(a, 4, 24, None, WS_SIZE)
    make_srd(a, 8, 26, None, 2048 * 1152)
    make_srd(a, 12, 28, None, 1152)
    make_srd(a, 16, 30, None, 2048 * 1152)
    a("v_lshlrev_b32 v1, 3, v0")
    a("v_lshlrev_b32 v2, 4, v0")
    a("s_mul_i32 s38, s37, 1152")
    a("s_mul_i32 s39, s37, 2304")
    a("s_mov_b32 s57, 0xffff0000")
    a("v_cmp_gt_u32 s[40:41], 16, v0")
    for c in range(3):
        if c == 2:
            a("s_mov_b64 s[42:43], exec")
            a("s_mov_b64 exec, s[40:41]")
        a(f"buffer_load_dwordx2 {vr(4 + 2 * c, 2)}, v1, s[8:11], s38 offen offset:{512 * c}")
        a(f"buffer_load_dwordx2 {vr(10 + 2 * c, 2)}, v1, s[12:15], 0 offen offset:{512 * c}")
        if c == 2:
            a("s_mov_b64 exec, s[42:43]")
    for c in range(3):
        if c == 2:
            a("s_mov_b64 exec, s[40:41]")
        for sp in range(5):
            a(f"s_add_u32 s44, s39, {P_OFF + sp * P_STRIDE}")
            a(f"buffer_load_dwordx4 {vr(32 + (c * 5 + sp) * 4, 4)}, v2, s[4:7], s44 offen offset:{1024 * c}")
        if c == 2:
            a("s_mov_b64 exec, s[42:43]")
    a("v_mov_b32 v16, 0")
    a("s_waitcnt vmcnt(15)")
    for c in range(3):
        if c == 2:
            a("s_mov_b64 exec, s[40:41]")
        for h in range(2):
            xr, gr = 4 + 2 * c + h, 10 + 2 * c + h
            a(f"v_lshlrev_b32 v17, 16, v{xr}")
            a(f"v_and_b32 v18, s57, v{xr}")
            a(f"v_lshlrev_b32 v19, 16, v{gr}")
            a(f"v_and_b32 v20, s57, v{gr}")
            a("v_mul_f32 v17, v17, v19")
            a("v_mul_f32 v18, v18, v20")
            a("v_cvt_pk_bf16_f32 v17, v17, v18")
            a("v_lshlrev_b32 v18, 16, v17")
            a("v_and_b32 v17, s57, v17")
            a("v_add_f32 v16, v16, v18")
            a("v_add_f32 v16, v16, v17")
        if c == 2:
            a("s_mov_b64 exec, s[42:43]")
    for m in (1, 2, 4, 8, 16):
        a(f"ds_swizzle_b32 v17, v16 offset:0x{(m << 10) | 0x1f:04x}")
        a("s_waitcnt lgkmcnt(0)")
        a("v_add_f32 v16, v16, v17")
    a("v_mov_b32 v17, v16")
    a("s_nop 1")
    a("v_permlane32_swap_b32 v16, v17")
    a("s_nop 1")
    a("v_add_f32 v16, v16, v17")
    a("v_cvt_pk_bf16_f32 v16, v16, v16")
    a("v_and_b32 v16, s57, v16")
    a("v_mul_f32 v16, 0xbfb8aa3b, v16")
    a("v_exp_f32 v16, v16")
    a("s_nop 0")
    a("v_add_f32 v16, 1.0, v16")
    a("v_rcp_f32 v16, v16")
    a("s_nop 0")
    a("v_cvt_pk_bf16_f32 v16, v16, v16")
    a("v_and_b32 v16, s57, v16")
    a("v_sub_f32 v17, 1.0, v16")
    a("v_cvt_pk_bf16_f32 v17, v17, v17")
    a("v_and_b32 v17, s57, v17")
    a("s_waitcnt vmcnt(0)")
    for c in range(3):
        for r in range(4):
            b0 = 32 + (c * 5) * 4 + r
            a(f"v_add_f32 v{b0}, v{b0}, v{b0 + 4}")
            a(f"v_add_f32 v{b0 + 8}, v{b0 + 8}, v{b0 + 12}")
            a(f"v_add_f32 v{b0}, v{b0}, v{b0 + 8}")
            a(f"v_cvt_pk_bf16_f32 v18, v{b0}, v{b0 + 16}")
            a("v_lshlrev_b32 v19, 16, v18")
            a("v_and_b32 v18, s57, v18")
            a("v_mul_f32 v18, v18, v16")
            a("v_mul_f32 v19, v19, v17")
            a("v_cvt_pk_bf16_f32 v18, v18, v19")
            a("v_lshlrev_b32 v19, 16, v18")
            a("v_and_b32 v18, s57, v18")
            a(f"v_add_f32 v{b0}, v18, v19")
        b0 = 32 + (c * 5) * 4
        a(f"v_cvt_pk_bf16_f32 v{20 + 2 * c}, v{b0}, v{b0 + 1}")
        a(f"v_cvt_pk_bf16_f32 v{21 + 2 * c}, v{b0 + 2}, v{b0 + 3}")
    for c in range(3):
        if c == 2:
            a("s_mov_b64 exec, s[40:41]")
        a(f"buffer_store_dwordx2 {vr(20 + 2 * c, 2)}, v1, s[16:19], s38 offen offset:{512 * c}")
    a.label(f"L_{name}_end")
    a("s_endpgm")
    kernel_desc(a, name, 96)


def main():
    hdr = open("cdna_kernels/" + KNAME + ".s.ref").read().split("\n")
    out = []
    for ln in hdr:
        if ln.startswith("; @launch"):
            break
        out.append(ln)
    k_k1 = "gm_k1_kernel"
    k_k2 = "gm_k2_kernel"
    k_k3 = KNAME + "_kernel"
    out.append(f"; @launch kernel={k_k1} grid=(256,1,1) block=(512,1,1) lds={K1_LDS}")
    out.append(f"; @launch kernel={k_k2} grid=(448,1,1) block=(512,1,1) lds={K2_LDS}")
    out.append(f"; @launch kernel={k_k3} grid=(192,1,1) block=(256,1,1) lds={gemm_lds('wo')}")
    out.append('.amdgcn_target "amdgcn-amd-amdhsa--gfx950"')
    a = Asm()
    gen_k1(a, k_k1)
    gen_k2(a, k_k2)
    gen_k3(a, k_k3)
    txt = "\n".join(out) + "\n" + a.text()
    dst = sys.argv[1] if len(sys.argv) > 1 else "cdna_kernels/" + KNAME + ".s"
    open(dst, "w").write(txt)
    print("wrote", dst, len(txt))


if __name__ == "__main__":
    main()
```

```python
import math
import sys
import os
ABL = os.environ.get('ABL', '')

KNAME = "gated_mix__mha_block__glu_gated_bilinear__prompt"

Q16_OFF = 0x000000
K16_OFF = 0x200000
Q2_OFF = 0x400000
K2_OFF = 0x440000
VT_OFF = 0x480000
O_OFF = 0x700000
H_OFF = 0x1000000
G_OFF = 0x6E0000
P_OFF = 0x3000000
WS_SIZE = 0x10000000
P_STRIDE = 2048 * 576 * 4

ARG_X, ARG_WQKV, ARG_WO, ARG_BX, ARG_WG, ARG_WU, ARG_WD, ARG_GW, ARG_OUT, ARG_DBG, ARG_WS = [8 * i for i in range(11)]


class Asm:
    def __init__(self):
        self.lines = []

    def __call__(self, s):
        self.lines.append("    " + s)

    def label(self, s):
        self.lines.append(s + ":")

    def raw(self, s):
        self.lines.append(s)

    def text(self):
        return "\n".join(self.lines) + "\n"


def vr(b, n):
    return f"v[{b}:{b + n - 1}]"


def sr(b, n):
    return f"s[{b}:{b + n - 1}]"


def kernel_begin(a, name):
    a.raw(".text")
    a.raw(f".globl {name}")
    a.raw(".p2align 8")
    a.raw(f".type {name},@function")
    a.label(name)


def kernel_desc(a, name, nvgpr, nsgpr=96):
    a.raw('.section .rodata,"a"')
    a.raw(".p2align 6")
    a.raw(f".amdhsa_kernel {name}")
    a.raw(f"  .amdhsa_next_free_vgpr {nvgpr}")
    a.raw(f"  .amdhsa_next_free_sgpr {nsgpr}")
    a.raw(f"  .amdhsa_accum_offset {((nvgpr + 3) // 4) * 4}")
    a.raw("  .amdhsa_group_segment_fixed_size 0")
    a.raw("  .amdhsa_kernarg_size 88")
    a.raw("  .amdhsa_user_sgpr_count 2")
    a.raw("  .amdhsa_user_sgpr_kernarg_segment_ptr 1")
    a.raw("  .amdhsa_system_sgpr_workgroup_id_x 1")
    a.raw(".end_amdhsa_kernel")


def make_srd(a, d, base_pair, off_sgpr_or_imm, nrec):
    lo, hi = base_pair, base_pair + 1
    if off_sgpr_or_imm is None:
        a(f"s_mov_b32 s{d}, s{lo}")
        a(f"s_and_b32 s{d + 1}, s{hi}, 0xffff")
    else:
        a(f"s_add_u32 s{d}, s{lo}, {off_sgpr_or_imm}")
        a(f"s_addc_u32 s{d + 1}, s{hi}, 0")
        a(f"s_and_b32 s{d + 1}, s{d + 1}, 0xffff")
    a(f"s_mov_b32 s{d + 2}, {nrec}")
    a(f"s_mov_b32 s{d + 3}, 0x20000")


QSCALE = math.log2(math.e) / math.sqrt(18.0)
import struct


def fbits(x):
    return struct.unpack("<I", struct.pack("<f", x))[0]


GEMM_CFG = {
    "qh": dict(NWN=3, NH=1, NJH=2, NWM=4, MI=4, NS=6, KU=2),
    "glu": dict(NWN=3, NH=2, NJH=3, NWM=4, MI=4, NS=4, KU=1),
    "fin": dict(NWN=2, NH=2, NJH=3, NWM=4, MI=2, NS=4, KU=1),
    "wo": dict(NWN=2, NH=1, NJH=3, NWM=2, MI=1, NS=6, KU=2),
}


def gemm_lds(kind):
    c = GEMM_CFG[kind]
    return c["NS"] * (c["NWM"] * c["MI"] * 1024 + c["NH"] * 32 * 32 * c["NJH"] * c["NWN"])


def gemm_phase(a, name, kind):
    c = GEMM_CFG[kind]
    NWN, NH, NJH, NWM, MI, NS = c["NWN"], c["NH"], c["NJH"], c["NWM"], c["MI"], c["NS"]
    KU = c["KU"]
    NSS = NS // KU
    name = name + "_" + kind
    NWAVE = NWM * NWN
    WSH = (16 * MI).bit_length() - 1
    BM = 16 * MI * NWM
    XB = BM * 64
    NXI = BM // 16
    HW = 16 * NJH * NWN
    RB = 2 * HW
    CH = RB // 16
    WBYTES = 32 * RB
    STAGE = XB + NH * WBYTES
    NWI = NH * WBYTES // 1024
    NJ = NJH * NH
    a(f"s_load_dwordx2 s[24:25], s[0:1], {ARG_WS}")
    a(f"s_load_dwordx2 s[26:27], s[0:1], {ARG_X}")
    if kind == "qh":
        a(f"s_load_dwordx2 s[28:29], s[0:1], {ARG_WQKV}")
    elif kind == "glu":
        a(f"s_load_dwordx2 s[28:29], s[0:1], {ARG_WG}")
        a(f"s_load_dwordx2 s[30:31], s[0:1], {ARG_WU}")
    elif kind == "fin":
        a(f"s_load_dwordx2 s[28:29], s[0:1], {ARG_WD}")
    else:
        a(f"s_load_dwordx2 s[28:29], s[0:1], {ARG_WO}")
    if kind in ("glu", "qh"):
        a("s_and_b32 s33, s2, 7")
        a("s_lshl_b32 s33, s33, 2")
        a("s_lshr_b32 s34, s2, 3")
        a("s_and_b32 s32, s34, 7")
        a("s_lshr_b32 s34, s34, 3")
        a("s_add_u32 s33, s33, s34")
    elif kind == "fin":
        a("s_sub_u32 s35, s2, 256")
        a("s_and_b32 s32, s35, 15")
        a("s_lshr_b32 s33, s35, 4")
        a("s_mul_i32 s34, s33, 0x5556")
        a("s_lshr_b32 s34, s34, 16")
        a("s_mul_i32 s35, s34, 3")
        a("s_sub_u32 s33, s33, s35")
    else:
        a("s_and_b32 s32, s2, 63")
        a("s_lshr_b32 s33, s2, 6")
        a("s_mov_b32 s34, 4")
    a(f"s_mul_i32 s37, s32, {BM}")
    a("s_waitcnt lgkmcnt(0)")
    if kind == "qh":
        make_srd(a, 4, 26, None, 2048 * 1152)
        make_srd(a, 8, 28, None, 576 * 3456)
        make_srd(a, 12, 28, None, 576 * 3456)
        a("s_mov_b32 s38, 1152")
        a("s_mov_b32 s39, 3456")
        a("s_mul_i32 s40, s33, 36")
        a("s_mov_b32 s41, s40")
        a(f"s_mov_b32 s62, {18 // NS - 1}")
    elif kind == "glu":
        make_srd(a, 4, 26, None, 2048 * 1152)
        make_srd(a, 8, 28, None, 576 * 9216)
        make_srd(a, 12, 30, None, 576 * 9216)
        a("s_mov_b32 s38, 1152")
        a("s_mov_b32 s39, 9216")
        a(f"s_mul_i32 s40, s33, {RB}")
        a("s_mov_b32 s41, s40")
        a(f"s_mov_b32 s62, {18 // NS - 1}")
    elif kind == "fin":
        a("s_mul_i32 s42, s34, 3072")
        a(f"s_add_u32 s42, s42, {H_OFF}")
        a(f"s_mul_i32 s60, s34, {1536 * 1152}")
        a(f"s_sub_u32 s61, {4608 * 1152}, s60")
        a(f"s_sub_u32 s43, {WS_SIZE}, s42")
        make_srd(a, 4, 24, "s42", "s43")
        make_srd(a, 8, 28, "s60", "s61")
        make_srd(a, 12, 28, "s60", "s61")
        a("s_movk_i32 s38, 9216")
        a("s_mov_b32 s39, 1152")
        a(f"s_mul_i32 s40, s33, {NH * RB}")
        a(f"s_add_u32 s41, s40, {RB}")
        a(f"s_mov_b32 s62, {48 // NS - 1}")
    else:
        make_srd(a, 4, 24, f"{O_OFF}", 2048 * 1152)
        make_srd(a, 8, 28, None, 576 * 1152)
        make_srd(a, 12, 28, None, 576 * 1152)
        a("s_mov_b32 s38, 1152")
        a("s_mov_b32 s39, 1152")
        a(f"s_mul_i32 s40, s33, {RB}")
        a("s_mov_b32 s41, s40")
        a(f"s_mov_b32 s62, {18 // NS - 1}")
    make_srd(a, 16, 24, None, WS_SIZE)
    PERH = NWI // NH
    NTOT = NXI + NWI
    NSLOT = (NTOT + NWAVE - 1) // NWAVE
    assert NSLOT <= 5
    SRD0, SOFF0, SSTR0, SM00 = 64, 84, 89, 94
    MAGIC, MSH = (0xaab, 15) if CH == 12 else (0xe39, 16)
    for e in range(NSLOT):
        sd = SRD0 + 4 * e
        vo = 32 + e
        a(f"s_add_u32 s47, s36, {e * NWAVE}")
        a(f"s_mov_b32 s{SOFF0 + e}, 0")
        a(f"s_cmp_lt_u32 s47, {NXI}")
        a(f"s_cbranch_scc0 L_{name}_w{e}")
        for q in range(4):
            a(f"s_mov_b32 s{sd + q}, s{4 + q}")
        a(f"s_mov_b32 s{SSTR0 + e}, 64")
        a(f"s_lshl_b32 s{SM00 + e}, s47, 10")
        a("v_lshrrev_b32 v1, 2, v0")
        a("s_lshl_b32 s48, s47, 4")
        a("s_add_u32 s48, s48, s37")
        a("v_add_u32 v1, s48, v1")
        a(f"v_mul_lo_u32 v{vo}, v1, s38")
        a("v_and_b32 v2, 3, v0")
        a("v_lshrrev_b32 v3, 5, v0")
        a("v_lshlrev_b32 v3, 1, v3")
        a("v_xor_b32 v2, v2, v3")
        a(f"v_lshl_add_u32 v{vo}, v2, 4, v{vo}")
        a(f"s_branch L_{name}_d{e}")
        a.label(f"L_{name}_w{e}")
        a(f"s_cmp_lt_u32 s47, {NTOT}")
        a(f"s_cbranch_scc0 L_{name}_z{e}")
        a(f"s_sub_u32 s47, s47, {NXI}")
        a(f"s_lshl_b32 s{SM00 + e}, s47, 10")
        a(f"s_add_u32 s{SM00 + e}, s{SM00 + e}, {XB}")
        a(f"s_lshl_b32 s{SSTR0 + e}, s39, 5")
        a(f"s_sub_u32 s48, s47, {PERH}")
        a(f"s_cmp_lt_u32 s47, {PERH}")
        for q in range(4):
            a(f"s_cselect_b32 s{sd + q}, s{8 + q}, s{12 + q}")
        a("s_cselect_b32 s46, s40, s41")
        a("s_cselect_b32 s47, s47, s48")
        a("s_lshl_b32 s47, s47, 6")
        a("v_add_u32 v1, s47, v0")
        a(f"v_mul_u32_u24 v2, {MAGIC}, v1")
        a(f"v_lshrrev_b32 v2, {MSH}, v2")
        a(f"v_mul_u32_u24 v3, {CH}, v2")
        a("v_sub_u32 v3, v1, v3")
        a("v_bfe_u32 v4, v2, 3, 1")
        if CH == 12:
            a("v_lshlrev_b32 v4, 1, v4")
            a("v_xor_b32 v3, v3, v4")
        else:
            a("v_lshlrev_b32 v4, 3, v4")
            a("v_xor_b32 v4, v3, v4")
            a("v_cmp_gt_u32 vcc, 16, v3")
            a("s_nop 1")
            a("v_cndmask_b32 v3, v3, v4, vcc")
        a("v_mul_lo_u32 v2, v2, s39")
        if kind == "qh":
            a("v_lshrrev_b32 v4, 2, v3")
            a("v_mul_u32_u24 v4, 1152, v4")
            a("v_and_b32 v3, 3, v3")
            a("v_add_u32 v2, v2, v4")
        a("v_lshl_add_u32 v2, v3, 4, v2")
        a(f"v_add_u32 v{vo}, s46, v2")
        a(f"s_branch L_{name}_d{e}")
        a.label(f"L_{name}_z{e}")
        a(f"s_mov_b32 s{sd}, s4")
        a(f"s_mov_b32 s{sd + 1}, s5")
        a(f"s_mov_b32 s{sd + 2}, 0")
        a(f"s_mov_b32 s{sd + 3}, 0x20000")
        a(f"s_mov_b32 s{SSTR0 + e}, 0")
        a(f"s_mov_b32 s{SM00 + e}, {LDS_DUMMY}")
        assert LDS_DUMMY + (NS - 1) * STAGE + 1024 <= 262144, (kind, NS, STAGE)
        a(f"v_mov_b32 v{vo}, 0")
        a.label(f"L_{name}_d{e}")
    a(f"s_and_b32 s49, s36, {NWM - 1}")
    a(f"s_lshr_b32 s50, s36, {NWM.bit_length() - 1}")
    a("v_and_b32 v1, 15, v0")
    a(f"s_lshl_b32 s47, s49, {WSH}")
    a("v_add_u32 v1, s47, v1")
    a("v_lshlrev_b32 v1, 6, v1")
    a("v_lshrrev_b32 v2, 4, v0")
    a("v_bfe_u32 v3, v0, 3, 1")
    a("v_lshlrev_b32 v3, 1, v3")
    a("v_xor_b32 v2, v2, v3")
    a("v_lshl_add_u32 v7, v2, 4, v1")
    a("v_lshrrev_b32 v1, 4, v0")
    a("v_bfe_u32 v2, v0, 2, 2")
    a("v_lshl_add_u32 v2, v1, 3, v2")
    a(f"v_mul_u32_u24 v2, {RB}, v2")
    a("v_and_b32 v3, 1, v0")
    a("v_lshl_add_u32 v2, v3, 3, v2")
    a(f"v_add_u32 v2, {XB}, v2")
    a("v_and_b32 v1, 1, v1")
    a(f"v_lshlrev_b32 v1, {1 if CH == 12 else 3}, v1")
    a("v_bfe_u32 v3, v0, 1, 1")
    a(f"s_mul_i32 s47, s50, {2 * NJH}")
    a("v_add_u32 v3, s47, v3")
    for j in range(NJH):
        a(f"v_add_u32 v4, {2 * j}, v3")
        a("v_xor_b32 v8, v4, v1")
        if CH != 12:
            a("v_cmp_gt_u32 vcc, 16, v4")
            a("s_nop 1")
            a("v_cndmask_b32 v8, v4, v8, vcc")
        a(f"v_lshl_add_u32 v{60 + j}, v8, 4, v2")
    ACC = 72
    XF = 40
    WF = 8
    WPW = NSLOT
    for j in range(NJH):
        a(f"v_add_u32 v{56 + j}, {2 * STAGE}, v{60 + j}")
    a(f"v_add_u32 v63, {2 * STAGE}, v7")
    if NS > 4:
        for j in range(NJH):
            a(f"v_add_u32 v{64 + j}, {4 * STAGE}, v{60 + j}")
        a(f"v_add_u32 v67, {4 * STAGE}, v7")

    def issue_dma(slot, only=None):
        buf = slot * STAGE
        for e in range(NSLOT):
            if only is not None and e != only:
                continue
            a(f"s_add_u32 m0, s{SM00 + e}, {buf}")
            a("s_nop 0")
            a(f"buffer_load_dwordx4 v{32 + e}, {sr(SRD0 + 4 * e, 4)}, s{SOFF0 + e} offen lds")
            a(f"s_add_u32 s{SOFF0 + e}, s{SOFF0 + e}, s{SSTR0 + e}")

    if kind == "wo":
        a("v_and_b32 v1, 15, v0")
        a(f"s_lshl_b32 s47, s49, {WSH}")
        a("s_add_u32 s47, s47, s37")
        a("v_add_u32 v1, s47, v1")
        a("v_lshlrev_b32 v5, 3, v1")
        a(f"s_mov_b32 s56, {G_OFF}")
        for i in range(MI):
            a(f"buffer_load_dwordx2 {vr(100 + 2 * i, 2)}, v5, s[16:19], s56 offen offset:{128 * i}")
        a("v_mul_u32_u24 v2, 2304, v1")
        a("v_lshrrev_b32 v3, 4, v0")
        a("v_lshl_add_u32 v2, v3, 4, v2")
        a("s_mul_i32 s56, s50, 192")
        a("s_lshl_b32 s57, s40, 1")
        a("s_add_u32 s56, s56, s57")
        a(f"s_add_u32 s56, s56, {P_OFF}")
        for i in range(MI):
            for j in range(NJ):
                for sp in range(3):
                    a(f"s_add_u32 s58, s56, {sp * P_STRIDE + i * 16 * 2304}")
                    a(f"buffer_load_dwordx4 {vr(104 + (((i * NJ + j) * 4) + sp) * 4, 4)}, v2, s[16:19], s58 offen offset:{j * 64}")
    for q in range(NS - KU):
        issue_dma(q)
    for i in range(NJ * MI * 4):
        a(f"v_mov_b32 v{ACC + i}, 0")

    def rd_x(slot, i):
        buf = (slot % 2) * STAGE
        xa = ["v7", "v63", "v67"][slot // 2]
        a(f"ds_read_b128 {vr(XF + 4 * i, 4)}, {xa} offset:{buf + i * 1024}")

    def rd_w(slot, j):
        buf = (slot % 2) * STAGE
        wb = [60, 56, 64][slot // 2]
        off = buf + (j // NJH) * WBYTES
        a(f"ds_read_b64_tr_b16 {vr(WF + 4 * j, 2)}, v{wb + j % NJH} offset:{off}")
        a(f"ds_read_b64_tr_b16 {vr(WF + 4 * j + 2, 2)}, v{wb + j % NJH} offset:{off + 4 * RB}")

    def stage(slot, swapped, wait, prefetch, nxt, sync=True):
        nslot = (slot + 1) % NS
        if sync:
            if wait is not None:
                a(f"s_waitcnt vmcnt({wait})")
                a("s_barrier")
        pend = []
        if sync and prefetch:
            pend = [((slot + NS - KU + u) % NS, e) for u in range(KU) for e in range(NSLOT)]
        per = (len(pend) + NJ - 1) // NJ
        for j in range(NJ):
            for i in range(MI):
                if j == 0:
                    a(f"s_waitcnt lgkmcnt({MI + 1 - i})")
                elif j == NJ - 1 and i == 0:
                    a(f"s_waitcnt lgkmcnt({2 * (NJ - 1) if nxt else 0})")
                d = vr(ACC + (j * MI + i) * 4, 4)
                if swapped:
                    a(f"v_mfma_f32_16x16x32_bf16 {d}, {vr(WF + 4 * j, 4)}, {vr(XF + 4 * i, 4)}, {d}")
                else:
                    a(f"v_mfma_f32_16x16x32_bf16 {d}, {vr(XF + 4 * i, 4)}, {vr(WF + 4 * j, 4)}, {d}")
                if j == NJ - 1 and nxt:
                    rd_x(nslot, i)
            for (sl, e) in pend[j * per:(j + 1) * per]:
                issue_dma(sl, e)
            if nxt:
                rd_w(nslot, j)

    def mainloop(swapped, tag):
        W1 = KU * WPW
        a(f"s_waitcnt vmcnt({(NSS - 2) * W1})")
        a("s_barrier")
        for j in range(NJ - 1):
            rd_w(0, j)
        for i in range(MI):
            rd_x(0, i)
        rd_w(0, NJ - 1)
        a.label(f"L_{name}_loop{tag}")
        for slot in range(NS):
            stage(slot, swapped, (NSS - 3) * W1, True, True, slot % KU == 0)
        a("s_sub_u32 s62, s62, 1")
        a("s_cmp_lg_u32 s62, 0")
        a(f"s_cbranch_scc1 L_{name}_loop{tag}")
        ntail = NS + (18 % NS if kind != "fin" else 0)
        nsup = ntail // KU
        for t in range(ntail):
            S = t // KU
            rem = nsup - 1 - S
            wait = max(0, min(NSS - 3, rem - 1)) * W1 if rem >= 1 else None
            stage(t % NS, swapped, wait, rem >= NSS - 1, t < ntail - 1, t % KU == 0)
        a("s_nop 7")
        a("s_nop 1")

    def acc(j, i, r):
        return ACC + (j * MI + i) * 4 + r

    if kind == "qh":
        a("s_cmp_eq_u32 s50, 2")
        a(f"s_cbranch_scc1 L_{name}_vpath")
        mainloop(True, "a")
        a("v_and_b32 v1, 15, v0")
        a(f"s_lshl_b32 s47, s49, {WSH}")
        a("s_add_u32 s47, s47, s37")
        a("v_add_u32 v1, s47, v1")
        a("s_cmp_eq_u32 s50, 0")
        a(f"s_cselect_b32 s63, 0x{fbits(QSCALE):08x}, 1.0")
        a("s_lshl_b32 s56, s50, 21")
        a("s_lshl_b32 s57, s33, 16")
        a("s_add_u32 s56, s56, s57")
        a("v_lshlrev_b32 v2, 4, v1")
        a("v_lshrrev_b32 v3, 5, v0")
        a("v_lshl_add_u32 v2, v3, 15, v2")
        a("v_bfe_u32 v3, v0, 4, 1")
        a("v_lshl_add_u32 v2, v3, 3, v2")
        a("s_lshl_b32 s57, s50, 18")
        a("s_lshl_b32 s58, s33, 13")
        a("s_add_u32 s57, s57, s58")
        a(f"s_add_u32 s57, s57, {Q2_OFF}")
        a("v_lshlrev_b32 v3, 2, v1")
        for i in range(MI):
            for r in range(4):
                a(f"v_mul_f32 v{acc(0, i, r)}, s63, v{acc(0, i, r)}")
            a(f"v_mul_f32 v{acc(1, i, 0)}, s63, v{acc(1, i, 0)}")
            a(f"v_mul_f32 v{acc(1, i, 1)}, s63, v{acc(1, i, 1)}")
            a(f"v_cvt_pk_bf16_f32 v{8 + 4 * i}, v{acc(0, i, 0)}, v{acc(0, i, 1)}")
            a(f"v_cvt_pk_bf16_f32 v{9 + 4 * i}, v{acc(0, i, 2)}, v{acc(0, i, 3)}")
            a(f"v_cvt_pk_bf16_f32 v{10 + 4 * i}, v{acc(1, i, 0)}, v{acc(1, i, 1)}")
        for i in range(MI):
            a(f"buffer_store_dwordx2 {vr(8 + 4 * i, 2)}, v2, s[16:19], s56 offen offset:{256 * i}")
        a("v_cmp_gt_u32 vcc, 16, v0")
        a("s_and_saveexec_b64 s[58:59], vcc")
        for i in range(MI):
            a(f"buffer_store_dword v{10 + 4 * i}, v3, s[16:19], s57 offen offset:{64 * i}")
        a("s_mov_b64 exec, s[58:59]")
        a(f"s_branch L_{name}_done")
        a.label(f"L_{name}_vpath")
        mainloop(False, "b")
        a("v_bfe_u32 v1, v0, 4, 1")
        a("v_lshlrev_b32 v1, 3, v1")
        a("v_bfe_u32 v2, v0, 5, 1")
        a("v_lshl_add_u32 v1, v2, 2, v1")
        a(f"s_lshl_b32 s47, s49, {WSH}")
        a("s_add_u32 s47, s47, s37")
        a("v_add_u32 v1, s47, v1")
        a("v_lshlrev_b32 v1, 1, v1")
        a("v_and_b32 v2, 15, v0")
        a("v_lshl_add_u32 v1, v2, 12, v1")
        a("s_mul_i32 s56, s33, 73728")
        a(f"s_add_u32 s56, s56, {VT_OFF}")
        a("s_add_u32 s57, s56, 65536")
        for j in range(2):
            for i in range(MI):
                a(f"v_cvt_pk_bf16_f32 v{8 + 8 * j + 2 * i}, v{acc(j, i, 0)}, v{acc(j, i, 1)}")
                a(f"v_cvt_pk_bf16_f32 v{9 + 8 * j + 2 * i}, v{acc(j, i, 2)}, v{acc(j, i, 3)}")
        for i in range(MI):
            a(f"buffer_store_dwordx2 {vr(8 + 2 * i, 2)}, v1, s[16:19], s56 offen offset:{32 * i}")
        a("v_cmp_gt_u32 vcc, 2, v2")
        a("s_and_saveexec_b64 s[58:59], vcc")
        for i in range(MI):
            a(f"buffer_store_dwordx2 {vr(16 + 2 * i, 2)}, v1, s[16:19], s57 offen offset:{32 * i}")
        a("s_mov_b64 exec, s[58:59]")
        a.label(f"L_{name}_done")
    elif kind == "glu":
        mainloop(True, "a")
        PIT = HW * 2 + 16
        a("s_barrier")
        a("v_and_b32 v1, 15, v0")
        a(f"s_lshl_b32 s47, s49, {WSH}")
        a("v_add_u32 v1, s47, v1")
        a(f"v_mul_u32_u24 v1, {PIT}, v1")
        a("v_lshrrev_b32 v2, 4, v0")
        a("v_lshl_add_u32 v1, v2, 3, v1")
        a("s_mul_i32 s56, s50, 96")
        a("v_add_u32 v1, s56, v1")
        a("s_mov_b32 s57, 0xffff0000")
        for i in range(MI):
            for jj in range(3):
                t = 8 + (jj & 1) * 16
                a(f"v_cvt_pk_bf16_f32 v{t}, v{acc(jj, i, 0)}, v{acc(jj, i, 1)}")
                a(f"v_cvt_pk_bf16_f32 v{t + 1}, v{acc(jj, i, 2)}, v{acc(jj, i, 3)}")
                a(f"v_cvt_pk_bf16_f32 v{t + 2}, v{acc(jj + 3, i, 0)}, v{acc(jj + 3, i, 1)}")
                a(f"v_cvt_pk_bf16_f32 v{t + 3}, v{acc(jj + 3, i, 2)}, v{acc(jj + 3, i, 3)}")
                a(f"v_lshlrev_b32 v{t + 4}, 16, v{t}")
                a(f"v_and_b32 v{t + 5}, s57, v{t}")
                a(f"v_lshlrev_b32 v{t + 6}, 16, v{t + 1}")
                a(f"v_and_b32 v{t + 7}, s57, v{t + 1}")
                a(f"v_lshlrev_b32 v{t + 8}, 16, v{t + 2}")
                a(f"v_and_b32 v{t + 9}, s57, v{t + 2}")
                a(f"v_lshlrev_b32 v{t + 10}, 16, v{t + 3}")
                a(f"v_and_b32 v{t + 11}, s57, v{t + 3}")
                for r in range(4):
                    a(f"v_mul_f32 v{t + 4 + r}, v{t + 4 + r}, v{t + 8 + r}")
                a(f"v_cvt_pk_bf16_f32 v{t + 12}, v{t + 4}, v{t + 5}")
                a(f"v_cvt_pk_bf16_f32 v{t + 13}, v{t + 6}, v{t + 7}")
                a(f"ds_write_b64 v1, {vr(t + 12, 2)} offset:{i * 16 * PIT + jj * 32}")
        a("s_waitcnt lgkmcnt(0)")
        a("s_barrier")
        NT = 64 * NWAVE
        NQ = BM * CH // NT
        a("s_lshl_b32 s47, s36, 6")
        a("v_add_u32 v1, s47, v0")
        a(f"s_add_u32 s56, s40, {H_OFF}")
        a("s_mul_i32 s57, s37, 9216")
        a("s_add_u32 s56, s56, s57")
        a("s_mov_b32 s57, 9216")
        a("s_mov_b32 s58, 0x38e38e39")
        for q in range(NQ):
            a(f"v_add_u32 v2, {q * NT}, v1")
            a("v_mul_hi_u32 v3, v2, s58")
            a("v_lshrrev_b32 v3, 2, v3")
            a(f"v_mul_u32_u24 v4, {CH}, v3")
            a("v_sub_u32 v4, v2, v4")
            a(f"v_mul_u32_u24 v5, {PIT}, v3")
            a("v_lshl_add_u32 v5, v4, 4, v5")
            a(f"ds_read_b128 {vr(72 + 4 * q, 4)}, v5")
            a("v_mul_lo_u32 v3, v3, s57")
            a(f"v_lshl_add_u32 v{40 + q}, v4, 4, v3")
        for q in range(NQ):
            a(f"s_waitcnt lgkmcnt({NQ - 1 - q})")
            a(f"buffer_store_dwordx4 {vr(72 + 4 * q, 4)}, v{40 + q}, s[16:19], s56 offen")
    elif kind == "fin":
        mainloop(True, "a")
        a("v_and_b32 v1, 15, v0")
        a(f"s_lshl_b32 s47, s49, {WSH}")
        a("s_add_u32 s47, s47, s37")
        a("v_add_u32 v1, s47, v1")
        a("v_mul_u32_u24 v1, 2304, v1")
        a("v_lshrrev_b32 v2, 4, v0")
        a("v_lshl_add_u32 v1, v2, 4, v1")
        a("s_mul_i32 s56, s50, 192")
        a("s_lshl_b32 s57, s40, 1")
        a("s_add_u32 s56, s56, s57")
        a(f"s_mul_i32 s57, s34, {P_STRIDE}")
        a("s_add_u32 s56, s56, s57")
        a(f"s_add_u32 s56, s56, {P_OFF}")
        a("v_add_u32 v1, s56, v1")
        for i in range(MI):
            a(f"s_mov_b32 s58, {i * 16 * 2304}")
            for j in range(NJ):
                a(f"buffer_store_dwordx4 {vr(acc(j, i, 0), 4)}, v1, s[16:19], s58 offen offset:{(j // NJH) * HW * 4 + (j % NJH) * 64}")


    else:
        a(f"s_load_dwordx2 s[30:31], s[0:1], {ARG_OUT}")
        mainloop(True, "a")
        a("v_lshrrev_b32 v3, 4, v0")
        a("v_mul_u32_u24 v4, 1152, v1")
        a("v_lshl_add_u32 v4, v3, 3, v4")
        a("s_mul_i32 s59, s50, 96")
        a("s_add_u32 s59, s59, s40")
        a("s_waitcnt lgkmcnt(0)")
        make_srd(a, 20, 30, None, 2048 * 1152)
        a("s_mov_b32 s57, 0xffff0000")
        for i in range(MI):
            for j in range(NJ):
                PB = 104 + (i * NJ + j) * 16
                for r in range(4):
                    b0 = PB + r
                    a(f"v_add_f32 v{b0}, v{b0}, v{b0 + 4}")
                    a(f"v_add_f32 v{b0}, v{b0}, v{b0 + 8}")
                    a(f"v_cvt_pk_bf16_f32 v8, v{b0}, v{acc(j, i, r)}")
                    a("v_lshlrev_b32 v9, 16, v8")
                    a("v_and_b32 v8, s57, v8")
                    a(f"v_mul_f32 v8, v8, v{100 + 2 * i}")
                    a(f"v_mul_f32 v9, v9, v{101 + 2 * i}")
                    a("v_cvt_pk_bf16_f32 v8, v8, v9")
                    a("v_lshlrev_b32 v9, 16, v8")
                    a("v_and_b32 v8, s57, v8")
                    a(f"v_add_f32 v{b0}, v8, v9")
                a(f"v_cvt_pk_bf16_f32 v{PB + 4}, v{PB}, v{PB + 1}")
                a(f"v_cvt_pk_bf16_f32 v{PB + 5}, v{PB + 2}, v{PB + 3}")
                a(f"s_add_u32 s58, s59, {i * 16 * 1152}")
                a(f"buffer_store_dwordx2 {vr(PB + 4, 2)}, v4, s[20:23], s58 offen offset:{j * 32}")


LDS_DUMMY = 143360


def wave_setup(a):
    a("v_lshrrev_b32 v1, 6, v0")
    a("v_and_b32 v0, 63, v0")
    a("s_nop 0")
    a("v_readfirstlane_b32 s36, v1")


def gate_code4(a, name):
    a(f"s_load_dwordx2 s[28:29], s[0:1], {ARG_GW}")
    a("s_lshl_b32 s38, s2, 3")
    a("s_lshl_b32 s39, s49, 2")
    a("s_add_u32 s38, s38, s39")
    a("s_mul_i32 s39, s38, 1152")
    a("s_waitcnt lgkmcnt(0)")
    make_srd(a, 12, 28, None, 1152)
    a("v_lshlrev_b32 v1, 3, v0")
    a("s_mov_b32 s57, 0xffff0000")
    a("v_cmp_gt_u32 s[40:41], 16, v0")
    a("s_mov_b64 s[42:43], exec")
    for c in range(3):
        if c == 2:
            a("s_mov_b64 exec, s[40:41]")
        a(f"buffer_load_dwordx2 {vr(64 + 2 * c, 2)}, v1, s[12:15], 0 offen offset:{512 * c}")
        for t in range(4):
            a(f"s_add_u32 s47, s39, {1152 * t}")
            a(f"buffer_load_dwordx2 {vr(70 + 6 * t + 2 * c, 2)}, v1, s[4:7], s47 offen offset:{512 * c}")
        if c == 2:
            a("s_mov_b64 exec, s[42:43]")
    for t in range(4):
        a(f"v_mov_b32 v{100 + t}, 0")
    a("s_waitcnt vmcnt(0)")
    for c in range(3):
        if c == 2:
            a("s_mov_b64 exec, s[40:41]")
        for h in range(2):
            gr = 64 + 2 * c + h
            a(f"v_lshlrev_b32 v110, 16, v{gr}")
            a(f"v_and_b32 v111, s57, v{gr}")
            for t in range(4):
                xr = 70 + 6 * t + 2 * c + h
                a(f"v_lshlrev_b32 v112, 16, v{xr}")
                a(f"v_and_b32 v113, s57, v{xr}")
                a("v_mul_f32 v112, v112, v110")
                a("v_mul_f32 v113, v113, v111")
                a("v_cvt_pk_bf16_f32 v112, v112, v113")
                a("v_lshlrev_b32 v113, 16, v112")
                a("v_and_b32 v112, s57, v112")
                a(f"v_add_f32 v{100 + t}, v{100 + t}, v113")
                a(f"v_add_f32 v{100 + t}, v{100 + t}, v112")
        if c == 2:
            a("s_mov_b64 exec, s[42:43]")
    for m in (1, 2, 4, 8, 16):
        for t in range(4):
            a(f"ds_swizzle_b32 v{104 + t}, v{100 + t} offset:0x{(m << 10) | 0x1f:04x}")
        a("s_waitcnt lgkmcnt(0)")
        for t in range(4):
            a(f"v_add_f32 v{100 + t}, v{100 + t}, v{104 + t}")
    for t in range(4):
        a(f"v_mov_b32 v{104 + t}, v{100 + t}")
    a("s_nop 1")
    for t in range(4):
        a(f"v_permlane32_swap_b32 v{100 + t}, v{104 + t}")
    a("s_nop 1")
    for t in range(4):
        z, o = 100 + t, 120 + 2 * t
        a(f"v_add_f32 v{z}, v{z}, v{104 + t}")
        a(f"v_cvt_pk_bf16_f32 v{z}, v{z}, v{z}")
        a(f"v_and_b32 v{z}, s57, v{z}")
        a(f"v_mul_f32 v{z}, 0xbfb8aa3b, v{z}")
        a(f"v_exp_f32 v{z}, v{z}")
        a("s_nop 0")
        a(f"v_add_f32 v{z}, 1.0, v{z}")
        a(f"v_rcp_f32 v{z}, v{z}")
        a("s_nop 0")
        a(f"v_cvt_pk_bf16_f32 v{z}, v{z}, v{z}")
        a(f"v_and_b32 v{o}, s57, v{z}")
        a(f"v_sub_f32 v{o + 1}, 1.0, v{o}")
        a(f"v_cvt_pk_bf16_f32 v{o + 1}, v{o + 1}, v{o + 1}")
        a(f"v_and_b32 v{o + 1}, s57, v{o + 1}")
    a("s_lshl_b32 s38, s38, 3")
    a(f"s_add_u32 s38, s38, {G_OFF}")
    a("v_mov_b32 v1, 0")
    a("v_cmp_eq_u32 vcc, 0, v0")
    a("s_and_saveexec_b64 s[42:43], vcc")
    a("buffer_store_dwordx4 v[120:123], v1, s[16:19], s38 offen")
    a("buffer_store_dwordx4 v[124:127], v1, s[16:19], s38 offen offset:16")
    a("s_mov_b64 exec, s[42:43]")


K1_STAGE = 16384 + 2 * 9216 + 6144
K1_NS = 4
K1_LDS = K1_NS * K1_STAGE


def gen_k1(a, name):
    MI, NJ = 8, 6
    STAGE, NS = K1_STAGE, K1_NS
    XB, WG_OFF, WU_OFF, WQ_OFF = 16384, 16384, 16384 + 9216, 16384 + 18432
    kernel_begin(a, name)
    a("s_cmp_ge_u32 s2, 256")
    a(f"s_cbranch_scc1 L_{name}_end")
    a(f"s_load_dwordx4 s[24:27], s[0:1], {ARG_X}")
    a(f"s_load_dwordx4 s[28:31], s[0:1], {ARG_WG}")
    a(f"s_load_dwordx2 s[52:53], s[0:1], {ARG_WD}")
    a(f"s_load_dwordx2 s[54:55], s[0:1], {ARG_WO}")
    a(f"s_load_dwordx2 s[60:61], s[0:1], {ARG_WS}")
    a("v_lshlrev_b32 v1, 4, v0")
    a("s_lshl_b32 s33, s2, 13")
    a("s_waitcnt lgkmcnt(0)")
    make_srd(a, 4, 24, None, 2048 * 1152)
    make_srd(a, 8, 28, None, 576 * 9216)
    make_srd(a, 12, 30, None, 576 * 9216)
    make_srd(a, 20, 26, None, 576 * 3456)
    make_srd(a, 16, 60, None, WS_SIZE)
    a("buffer_load_dword v15, v1, s[4:7], s33 offen")
    a("buffer_load_dword v15, v1, s[20:23], s33 offen")
    a("buffer_load_dword v15, v1, s[8:11], s33 offen")
    a("buffer_load_dword v15, v1, s[12:15], s33 offen")
    a(f"s_add_u32 s34, s33, {256 * 8192}")
    a("buffer_load_dword v15, v1, s[4:7], s34 offen")
    a("buffer_load_dword v15, v1, s[8:11], s34 offen")
    a("buffer_load_dword v15, v1, s[12:15], s34 offen")
    a(f"s_add_u32 s34, s33, {512 * 8192}")
    a("buffer_load_dword v15, v1, s[8:11], s34 offen")
    a("buffer_load_dword v15, v1, s[12:15], s34 offen")
    wave_setup(a)
    a("s_and_b32 s33, s2, 7")
    a("s_lshl_b32 s33, s33, 2")
    a("s_lshr_b32 s34, s2, 3")
    a("s_and_b32 s32, s34, 7")
    a("s_lshr_b32 s34, s34, 3")
    a("s_add_u32 s33, s33, s34")
    a("s_lshl_b32 s37, s32, 8")
    a("s_and_b32 s49, s36, 1")
    a("s_lshr_b32 s50, s36, 1")
    SRD0, SOFF0, SSTR0, SM00 = 64, 84, 89, 94
    for e in range(5):
        sd, vo = SRD0 + 4 * e, 2 + e
        a(f"s_add_u32 s47, s36, {e * 8}")
        a(f"s_mov_b32 s{SOFF0 + e}, 0")
        a(f"s_lshl_b32 s{SM00 + e}, s47, 10")
        if e < 2:
            for q in range(4):
                a(f"s_mov_b32 s{sd + q}, s{4 + q}")
            a(f"s_mov_b32 s{SSTR0 + e}, 64")
            a("v_lshrrev_b32 v8, 2, v0")
            a("s_lshl_b32 s48, s47, 4")
            a("s_add_u32 s48, s48, s37")
            a("v_add_u32 v8, s48, v8")
            a(f"v_mul_u32_u24 v{vo}, 1152, v8")
            a("v_and_b32 v9, 3, v0")
            a("v_lshrrev_b32 v10, 5, v0")
            a("v_lshlrev_b32 v10, 1, v10")
            a("v_xor_b32 v9, v9, v10")
            a(f"v_lshl_add_u32 v{vo}, v9, 4, v{vo}")
        else:
            a("s_cmp_lt_u32 s47, 34")
            a(f"s_cbranch_scc0 L_{name}_q{e}")
            a("s_sub_u32 s47, s47, 16")
            a("s_sub_u32 s48, s47, 9")
            a("s_cmp_lt_u32 s47, 9")
            for q in range(4):
                a(f"s_cselect_b32 s{sd + q}, s{8 + q}, s{12 + q}")
            a("s_cselect_b32 s47, s47, s48")
            a(f"s_mov_b32 s{SSTR0 + e}, {32 * 9216}")
            a("s_lshl_b32 s47, s47, 6")
            a("v_add_u32 v8, s47, v0")
            a("v_mul_u32_u24 v9, 0xe39, v8")
            a("v_lshrrev_b32 v9, 16, v9")
            a("v_mul_u32_u24 v10, 18, v9")
            a("v_sub_u32 v10, v8, v10")
            a("v_bfe_u32 v11, v9, 3, 1")
            a("v_lshlrev_b32 v11, 3, v11")
            a("v_xor_b32 v11, v10, v11")
            a("v_cmp_gt_u32 vcc, 16, v10")
            a("s_nop 1")
            a("v_cndmask_b32 v10, v10, v11, vcc")
            a("v_mul_u32_u24 v9, 9216, v9")
            a("v_lshl_add_u32 v9, v10, 4, v9")
            a("s_mul_i32 s48, s33, 288")
            a(f"v_add_u32 v{vo}, s48, v9")
            a(f"s_branch L_{name}_d{e}")
            a.label(f"L_{name}_q{e}")
            a("s_sub_u32 s47, s47, 34")
            for q in range(4):
                a(f"s_mov_b32 s{sd + q}, s{20 + q}")
            a(f"s_mov_b32 s{SSTR0 + e}, {32 * 3456}")
            a("s_lshl_b32 s47, s47, 6")
            a("v_add_u32 v8, s47, v0")
            a("v_mul_u32_u24 v9, 0xaab, v8")
            a("v_lshrrev_b32 v9, 15, v9")
            a("v_mul_u32_u24 v10, 12, v9")
            a("v_sub_u32 v10, v8, v10")
            a("v_bfe_u32 v11, v9, 3, 1")
            a("v_lshlrev_b32 v11, 1, v11")
            a("v_xor_b32 v10, v10, v11")
            a("v_mul_u32_u24 v9, 3456, v9")
            a("v_lshrrev_b32 v11, 2, v10")
            a("v_mul_u32_u24 v11, 1152, v11")
            a("v_and_b32 v10, 3, v10")
            a("v_add_u32 v9, v9, v11")
            a("v_lshl_add_u32 v9, v10, 4, v9")
            a("s_mul_i32 s48, s33, 36")
            a(f"v_add_u32 v{vo}, s48, v9")
            a.label(f"L_{name}_d{e}")

    def issue_dma(slot, only=None):
        buf = slot * STAGE
        for e in range(5):
            if only is not None and e != only:
                continue
            a(f"s_add_u32 m0, s{SM00 + e}, {buf}")
            a("s_nop 0")
            a(f"buffer_load_dwordx4 v{2 + e}, {sr(SRD0 + 4 * e, 4)}, s{SOFF0 + e} offen lds")
            a(f"s_add_u32 s{SOFF0 + e}, s{SOFF0 + e}, s{SSTR0 + e}")

    for q in range(NS - 1):
        issue_dma(q)
    make_srd(a, 40, 52, None, 4608 * 1152)
    a("s_lshl_b32 s48, s2, 13")
    a("s_lshl_b32 s47, s36, 10")
    a("v_lshl_add_u32 v8, v0, 4, s47")
    a("buffer_load_dword v14, v8, s[40:43], s48 offen")
    a(f"s_add_u32 s47, s48, {256 * 8192}")
    a("buffer_load_dword v14, v8, s[40:43], s47 offen")
    a(f"s_add_u32 s47, s48, {512 * 8192}")
    a("buffer_load_dword v14, v8, s[40:43], s47 offen")
    make_srd(a, 40, 54, None, 576 * 1152)
    a("buffer_load_dword v14, v8, s[40:43], s48 offen")
    NWARM = 4
    a("v_and_b32 v9, 15, v0")
    a("s_lshl_b32 s47, s49, 7")
    a("v_add_u32 v9, s47, v9")
    a("v_lshlrev_b32 v9, 6, v9")
    a("v_lshrrev_b32 v10, 4, v0")
    a("v_bfe_u32 v11, v0, 3, 1")
    a("v_lshlrev_b32 v11, 1, v11")
    a("v_xor_b32 v10, v10, v11")
    a("v_lshl_add_u32 v7, v10, 4, v9")
    a(f"v_add_u32 v8, {2 * STAGE}, v7")
    ACC = 64
    WF = 16
    XB4 = [40, 44, 48, 10]
    WA = 52
    for i in range(NJ * MI * 4):
        a(f"v_mov_b32 v{ACC + i}, 0")

    def w_addr_setup(isq):
        RB = 192 if isq else 288
        a("v_lshrrev_b32 v9, 4, v0")
        a("v_bfe_u32 v10, v0, 2, 2")
        a("v_lshl_add_u32 v10, v9, 3, v10")
        a(f"v_mul_u32_u24 v10, {RB}, v10")
        a("v_and_b32 v11, 1, v0")
        a("v_lshl_add_u32 v10, v11, 3, v10")
        a("v_and_b32 v9, 1, v9")
        a(f"v_lshlrev_b32 v9, {1 if isq else 3}, v9")
        a("v_bfe_u32 v11, v0, 1, 1")
        if not isq:
            a("s_mul_i32 s47, s50, 6")
            a("v_add_u32 v11, s47, v11")
        for j in range(6):
            jj = j if isq else j % 3
            base = WQ_OFF if isq else (WG_OFF if j < 3 else WU_OFF)
            a(f"v_add_u32 v12, {2 * jj}, v11")
            a("v_xor_b32 v13, v12, v9")
            if not isq:
                a("v_cmp_gt_u32 vcc, 16, v12")
                a("s_nop 1")
                a("v_cndmask_b32 v13, v12, v13, vcc")
            a(f"v_lshl_add_u32 v{WA + j}, v13, 4, v10")
            a(f"v_add_u32 v{WA + j}, {base}, v{WA + j}")
            a(f"v_add_u32 v{WA + 6 + j}, {2 * STAGE}, v{WA + j}")

    def rd_x(slot, i):
        buf = (slot % 2) * STAGE
        a(f"ds_read_b128 {vr(XB4[i % 4], 4)}, {'v7' if slot < 2 else 'v8'} offset:{buf + i * 1024}")

    def rd_w(slot, j, RB):
        buf = (slot % 2) * STAGE
        wa = WA + j + (0 if slot < 2 else 6)
        a(f"ds_read_b64_tr_b16 {vr(WF + 4 * j, 2)}, v{wa} offset:{buf}")
        a(f"ds_read_b64_tr_b16 {vr(WF + 4 * j + 2, 2)}, v{wa} offset:{buf + 4 * RB}")

    def stage(slot, isq, wait, prefetch, nxt):
        RB = 192 if isq else 288
        nslot = (slot + 1) % NS
        if wait is not None:
            a(f"s_waitcnt vmcnt({wait})")
            a("s_barrier")
        for i in range(MI):
            if i >= 3:
                young = 3 if nxt else min(3, MI - 1 - i)
                a(f"s_waitcnt lgkmcnt({young})")
            for j in range(NJ):
                if i == 0:
                    a(f"s_waitcnt lgkmcnt({2 * (5 - j) + 1})")
                d = vr(ACC + (j * MI + i) * 4, 4)
                xw = vr(XB4[i % 4], 4)
                ww = vr(WF + 4 * j, 4)
                if 'k1nomfma' in ABL:
                    pass
                elif isq and j >= 4:
                    a(f"v_mfma_f32_16x16x32_bf16 {d}, {xw}, {ww}, {d}")
                else:
                    a(f"v_mfma_f32_16x16x32_bf16 {d}, {ww}, {xw}, {d}")
                if i == MI - 1 and nxt:
                    rd_w(nslot, j, RB)
            if prefetch and i < 5:
                issue_dma((slot + NS - 1) % NS, i)
            if i + 4 < MI:
                rd_x(slot, i + 4)
            elif nxt:
                rd_x(nslot, i + 4 - MI)

    def mainloop(isq, tag):
        RB = 192 if isq else 288
        a(f"s_waitcnt vmcnt({(NS - 2) * 5 + NWARM})")
        a("s_barrier")
        rd_x(0, 0)
        rd_x(0, 1)
        rd_x(0, 2)
        for j in range(NJ):
            rd_w(0, j, RB)
        rd_x(0, 3)
        a(f"s_mov_b32 s62, {1 if 'k1short' in ABL else 3}")
        a.label(f"L_{name}_loop{tag}")
        for slot in range(NS):
            stage(slot, isq, (NS - 3) * 5, True, True)
        a("s_sub_u32 s62, s62, 1")
        a("s_cmp_lg_u32 s62, 0")
        a(f"s_cbranch_scc1 L_{name}_loop{tag}")
        ntail = 6
        for t in range(ntail):
            rem = ntail - 1 - t
            wait = max(0, min(NS - 3, rem - 1)) * 5 if rem >= 1 else None
            stage(t % NS, isq, wait, rem >= NS - 1, rem >= 1)
        a("s_nop 7")
        a("s_nop 1")
        if 'k1noepi' in ABL:
            a("s_endpgm")

    def acc(j, i, r):
        return ACC + (j * MI + i) * 4 + r

    PIT = 288 + 16
    if 'noprio' not in ABL:
        a("s_cmp_lt_u32 s36, 4")
        a(f"s_cbranch_scc1 L_{name}_np")
        a("s_setprio 1")
        a.label(f"L_{name}_np")
    a("s_cmp_eq_u32 s50, 3")
    a(f"s_cbranch_scc1 L_{name}_qpath")
    w_addr_setup(False)
    mainloop(False, "g")
    a("s_barrier")
    a("v_and_b32 v1, 15, v0")
    a("s_lshl_b32 s47, s49, 7")
    a("v_add_u32 v1, s47, v1")
    a(f"v_mul_u32_u24 v1, {PIT}, v1")
    a("v_lshrrev_b32 v2, 4, v0")
    a("v_lshl_add_u32 v1, v2, 3, v1")
    a("s_mul_i32 s56, s50, 96")
    a("v_add_u32 v1, s56, v1")
    a("s_mov_b32 s57, 0xffff0000")
    for i in range(MI):
        for jj in range(3):
            t = 16 + (jj & 1) * 16
            a(f"v_cvt_pk_bf16_f32 v{t}, v{acc(jj, i, 0)}, v{acc(jj, i, 1)}")
            a(f"v_cvt_pk_bf16_f32 v{t + 1}, v{acc(jj, i, 2)}, v{acc(jj, i, 3)}")
            a(f"v_cvt_pk_bf16_f32 v{t + 2}, v{acc(jj + 3, i, 0)}, v{acc(jj + 3, i, 1)}")
            a(f"v_cvt_pk_bf16_f32 v{t + 3}, v{acc(jj + 3, i, 2)}, v{acc(jj + 3, i, 3)}")
            a(f"v_lshlrev_b32 v{t + 4}, 16, v{t}")
            a(f"v_and_b32 v{t + 5}, s57, v{t}")
            a(f"v_lshlrev_b32 v{t + 6}, 16, v{t + 1}")
            a(f"v_and_b32 v{t + 7}, s57, v{t + 1}")
            a(f"v_lshlrev_b32 v{t + 8}, 16, v{t + 2}")
            a(f"v_and_b32 v{t + 9}, s57, v{t + 2}")
            a(f"v_lshlrev_b32 v{t + 10}, 16, v{t + 3}")
            a(f"v_and_b32 v{t + 11}, s57, v{t + 3}")
            for r in range(4):
                a(f"v_mul_f32 v{t + 4 + r}, v{t + 4 + r}, v{t + 8 + r}")
            a(f"v_cvt_pk_bf16_f32 v{t + 12}, v{t + 4}, v{t + 5}")
            a(f"v_cvt_pk_bf16_f32 v{t + 13}, v{t + 6}, v{t + 7}")
            a(f"ds_write_b64 v1, {vr(t + 12, 2)} offset:{i * 16 * PIT + jj * 32}")
    a(f"s_branch L_{name}_hstore")
    a.label(f"L_{name}_qpath")
    w_addr_setup(True)
    mainloop(True, "q")
    a("s_barrier")
    a("v_and_b32 v1, 15, v0")
    a("s_lshl_b32 s47, s49, 7")
    a("s_add_u32 s47, s47, s37")
    a("v_add_u32 v1, s47, v1")
    a("v_lshlrev_b32 v2, 4, v1")
    a("v_lshrrev_b32 v3, 5, v0")
    a("v_lshl_add_u32 v2, v3, 15, v2")
    a("v_bfe_u32 v3, v0, 4, 1")
    a("v_lshl_add_u32 v2, v3, 3, v2")
    a("v_lshlrev_b32 v3, 2, v1")
    a(f"s_mov_b32 s63, 0x{fbits(QSCALE):08x}")
    a("v_cmp_gt_u32 vcc, 16, v0")
    for sel in range(2):
        a("s_lshl_b32 s56, s33, 16")
        a(f"s_add_u32 s56, s56, {sel * 0x200000}")
        a("s_lshl_b32 s57, s33, 13")
        a(f"s_add_u32 s57, s57, {Q2_OFF + sel * 0x40000}")
        j0 = 2 * sel
        for i in range(MI):
            if sel == 0:
                for r in range(4):
                    a(f"v_mul_f32 v{acc(0, i, r)}, s63, v{acc(0, i, r)}")
                a(f"v_mul_f32 v{acc(1, i, 0)}, s63, v{acc(1, i, 0)}")
                a(f"v_mul_f32 v{acc(1, i, 1)}, s63, v{acc(1, i, 1)}")
            a(f"v_cvt_pk_bf16_f32 v{16 + 4 * i}, v{acc(j0, i, 0)}, v{acc(j0, i, 1)}")
            a(f"v_cvt_pk_bf16_f32 v{17 + 4 * i}, v{acc(j0, i, 2)}, v{acc(j0, i, 3)}")
            a(f"v_cvt_pk_bf16_f32 v{18 + 4 * i}, v{acc(j0 + 1, i, 0)}, v{acc(j0 + 1, i, 1)}")
        for i in range(MI):
            a(f"buffer_store_dwordx2 {vr(16 + 4 * i, 2)}, v2, s[16:19], s56 offen offset:{256 * i}")
        a("s_and_saveexec_b64 s[58:59], vcc")
        for i in range(MI):
            a(f"buffer_store_dword v{18 + 4 * i}, v3, s[16:19], s57 offen offset:{64 * i}")
        a("s_mov_b64 exec, s[58:59]")
        a("s_nop 1")
    a("v_bfe_u32 v1, v0, 4, 1")
    a("v_lshlrev_b32 v1, 3, v1")
    a("v_bfe_u32 v2, v0, 5, 1")
    a("v_lshl_add_u32 v1, v2, 2, v1")
    a("s_lshl_b32 s47, s49, 7")
    a("s_add_u32 s47, s47, s37")
    a("v_add_u32 v1, s47, v1")
    a("v_lshlrev_b32 v1, 1, v1")
    a("v_and_b32 v2, 15, v0")
    a("v_lshl_add_u32 v1, v2, 12, v1")
    a("s_mul_i32 s56, s33, 73728")
    a(f"s_add_u32 s56, s56, {VT_OFF}")
    a("s_add_u32 s57, s56, 65536")
    for j in range(2):
        for i in range(MI):
            a(f"v_cvt_pk_bf16_f32 v{16 + 16 * j + 2 * i}, v{acc(4 + j, i, 0)}, v{acc(4 + j, i, 1)}")
            a(f"v_cvt_pk_bf16_f32 v{17 + 16 * j + 2 * i}, v{acc(4 + j, i, 2)}, v{acc(4 + j, i, 3)}")
    for i in range(MI):
        a(f"buffer_store_dwordx2 {vr(16 + 2 * i, 2)}, v1, s[16:19], s56 offen offset:{32 * i}")
    a("v_cmp_gt_u32 vcc, 2, v2")
    a("s_and_saveexec_b64 s[58:59], vcc")
    for i in range(MI):
        a(f"buffer_store_dwordx2 {vr(32 + 2 * i, 2)}, v1, s[16:19], s57 offen offset:{32 * i}")
    a("s_mov_b64 exec, s[58:59]")
    gate_code4(a, name)
    a.label(f"L_{name}_hstore")
    a("s_waitcnt lgkmcnt(0)")
    a("s_barrier")
    NT, NQ = 512, 9
    a("s_lshl_b32 s47, s36, 6")
    a("v_add_u32 v1, s47, v0")
    a("s_mul_i32 s56, s33, 288")
    a(f"s_add_u32 s56, s56, {H_OFF}")
    a("s_mul_i32 s57, s37, 9216")
    a("s_add_u32 s56, s56, s57")
    a("s_mov_b32 s57, 9216")
    a("s_mov_b32 s58, 0x38e38e39")
    for q in range(NQ):
        a(f"v_add_u32 v2, {q * NT}, v1")
        a("v_mul_hi_u32 v3, v2, s58")
        a("v_lshrrev_b32 v3, 2, v3")
        a("v_mul_u32_u24 v4, 18, v3")
        a("v_sub_u32 v4, v2, v4")
        a(f"v_mul_u32_u24 v5, {PIT}, v3")
        a("v_lshl_add_u32 v5, v4, 4, v5")
        a(f"ds_read_b128 {vr(64 + 4 * q, 4)}, v5")
        a("v_mul_lo_u32 v3, v3, s57")
        a(f"v_lshl_add_u32 v{50 + q}, v4, 4, v3")
    for q in range(NQ):
        a(f"s_waitcnt lgkmcnt({NQ - 1 - q})")
        a(f"buffer_store_dwordx4 {vr(64 + 4 * q, 4)}, v{50 + q}, s[16:19], s56 offen")
    a.label(f"L_{name}_end")
    a("s_endpgm")
    kernel_desc(a, name, 256, 102)


B_V = 16384
B_VSTR = 1040
B_K2 = B_V + 19 * B_VSTR
B_BUF = B_K2 + 2048
K2_LDS = 81920


def attn_role(a, name):
    a(f"s_load_dwordx2 s[24:25], s[0:1], {ARG_WS}")
    a("s_and_b32 s32, s2, 31")
    a("s_lshr_b32 s33, s2, 5")
    a("v_lshlrev_b32 v1, 4, v0")
    a("s_waitcnt lgkmcnt(0)")
    make_srd(a, 4, 24, None, WS_SIZE)
    GO, GI, LO = 40, 46, 52
    for e in range(5):
        a(f"s_add_u32 s60, s36, {8 * e}")
        if e < 2:
            a("s_lshl_b32 s61, s32, 16")
            a(f"s_add_u32 s61, s61, {K16_OFF + e * 32768}")
            a("s_lshl_b32 s62, s36, 10")
            a(f"s_add_u32 s{GO + e}, s61, s62")
            a(f"s_mov_b32 s{GI + e}, 8192")
            a(f"s_add_u32 s{LO + e}, s62, {e * 8192}")
        elif e < 4:
            a("s_sub_u32 s60, s60, 16")
            a("s_mul_i32 s61, s32, 73728")
            a(f"s_add_u32 s61, s61, {VT_OFF}")
            a("s_lshl_b32 s62, s60, 12")
            a(f"s_add_u32 s{GO + e}, s61, s62")
            a(f"s_mov_b32 s{GI + e}, 1024")
            a(f"s_mul_i32 s{LO + e}, s60, {B_VSTR}")
            a(f"s_add_u32 s{LO + e}, s{LO + e}, {B_V}")
        else:
            a("s_mul_i32 s61, s32, 73728")
            a(f"s_add_u32 s61, s61, {VT_OFF + 16 * 4096}")
            a("s_lshl_b32 s62, s36, 12")
            a("s_add_u32 s61, s61, s62")
            a(f"s_mul_i32 s63, s36, {B_VSTR}")
            a(f"s_add_u32 s63, s63, {B_V + 16 * B_VSTR}")
            a("s_lshl_b32 s64, s32, 13")
            a(f"s_add_u32 s64, s64, {K2_OFF - 2048}")
            a("s_lshl_b32 s62, s36, 10")
            a("s_add_u32 s64, s64, s62")
            a(f"s_add_u32 s65, s62, {B_K2 - 2048}")
            a("s_cmp_lt_u32 s36, 2")
            a(f"s_cselect_b32 s{GO + e}, s61, s64")
            a(f"s_cselect_b32 s{LO + e}, s63, s65")
            a(f"s_cselect_b32 s{GI + e}, 1024, 2048") if False else None
            a("s_mov_b32 s66, 1024")
            a(f"s_cselect_b32 s{GI + e}, s66, 2048")
            a("s_cmp_lt_u32 s36, 4")
            a(f"s_cselect_b32 s{LO + e}, s{LO + e}, {K2_LDS + 2048}")

    def issue_chunk(buf_sgpr):
        for e in range(5):
            a(f"s_add_u32 m0, s{LO + e}, {buf_sgpr}")
            a("s_nop 0")
            a(f"buffer_load_dwordx4 v1, s[4:7], s{GO + e} offen lds")
            a(f"s_add_u32 s{GO + e}, s{GO + e}, s{GI + e}")

    a("s_setprio 2")
    QF1, QF2 = 8, 12
    a("v_and_b32 v2, 31, v0")
    a("s_lshl_b32 s60, s33, 8")
    a("s_lshl_b32 s61, s36, 5")
    a("s_add_u32 s60, s60, s61")
    a("v_add_u32 v2, s60, v2")
    a("v_lshrrev_b32 v3, 5, v0")
    a("v_lshlrev_b32 v4, 4, v2")
    a("v_lshl_add_u32 v4, v3, 15, v4")
    a("s_lshl_b32 s60, s32, 16")
    a(f"s_add_u32 s60, s60, {Q16_OFF}")
    a(f"buffer_load_dwordx4 {vr(QF1, 4)}, v4, s[4:7], s60 offen")
    a("v_lshlrev_b32 v4, 2, v2")
    a("s_lshl_b32 s60, s32, 13")
    a(f"s_add_u32 s60, s60, {Q2_OFF}")
    a(f"buffer_load_dword v{QF2}, v4, s[4:7], s60 offen")
    issue_chunk("0")
    issue_chunk(str(B_BUF))
    for r in range(1, 4):
        a(f"v_mov_b32 v{QF2 + r}, 0")
    a("v_mov_b32 v110, 0x3f803f80")
    a("v_mov_b32 v111, 0x3f803f80")
    a("s_and_b32 s60, s36, 1")
    a("s_lshl_b32 s60, s60, 9")
    a("s_lshr_b32 s61, s36, 1")
    a("s_and_b32 s61, s61, 1")
    a(f"s_mul_i32 s61, s61, {B_BUF}")
    a("s_add_u32 s60, s60, s61")
    a("v_lshlrev_b32 v4, 3, v0")
    a("v_add_u32 v4, s60, v4")
    a(f"v_add_u32 v4, {B_V + 18 * B_VSTR}, v4")
    a("ds_write_b64 v4, v[110:111]")
    a("v_and_b32 v4, 31, v0")
    a("v_lshlrev_b32 v5, 4, v4")
    a("v_lshl_add_u32 v5, v3, 13, v5")
    a("v_lshlrev_b32 v6, 2, v4")
    a(f"v_add_u32 v6, {B_K2}, v6")
    a("v_min_u32 v7, 18, v4")
    a(f"v_mul_u32_u24 v7, {B_VSTR}, v7")
    a("v_lshl_add_u32 v7, v3, 4, v7")
    a(f"v_add_u32 v7, {B_V}, v7")
    a(f"v_add_u32 v120, {B_BUF}, v5")
    a(f"v_add_u32 v121, {B_BUF}, v6")
    a(f"v_add_u32 v122, {B_BUF}, v7")
    KF, K2F, VF = 16, 20, 24
    SA, SB = 32, 48
    PF = 64
    OA = 72
    NEGM = 88
    VT1, VT2, VAL = 104, 105, 106
    for r in range(1, 4):
        a(f"v_mov_b32 v{K2F + r}, 0")
    for r in range(16):
        a(f"v_mov_b32 v{OA + r}, 0")
    for r in range(8):
        a(f"v_mov_b32 v{PF + r}, 0")
    a("s_waitcnt vmcnt(5) lgkmcnt(0)")
    a("v_cmp_gt_u32 vcc, 32, v0")
    a("s_nop 1")
    a(f"v_cndmask_b32 v{QF2}, 0, v{QF2}, vcc")
    a("s_barrier")

    def read_K(t):
        ka, k2a = ("v5", "v6") if t < 16 else ("v120", "v121")
        tt = t % 16
        a(f"ds_read_b128 {vr(KF, 4)}, {ka} offset:{tt * 512}")
        a(f"ds_read_b32 v{K2F}, {k2a} offset:{tt * 128}")

    def read_V(t):
        for b in range(2):
            a(f"ds_read_b128 {vr(VF + 4 * b, 4)}, v7 offset:{t * 64 + b * 32}")

    def tile_max_ops(S):
        mx = [f"v_max3_f32 v{VT1}, v{S}, v{S + 1}, v{S + 2}"]
        for k in range(6):
            mx.append(f"v_max3_f32 v{VT1}, v{S + 3 + 2 * k}, v{S + 4 + 2 * k}, v{VT1}")
        mx.append(f"v_max_f32 v{VT1}, v{S + 15}, v{VT1}")
        return mx

    def cross_half_max():
        a(f"v_mov_b32 v{VT2}, v{VT1}")
        a("s_nop 1")
        a(f"v_permlane32_swap_b32 v{VT1}, v{VT2}")
        a("s_nop 1")
        a(f"v_max_f32 v{VT1}, v{VT1}, v{VT2}")

    def pv_mfma(b):
        d = vr(OA, 16)
        return f"v_mfma_f32_32x32x16_bf16 {d}, {vr(VF + 4 * b, 4)}, {vr(PF + 4 * b, 4)}, {d}"

    def qk_mfma(S, n, c=None):
        d = vr(S, 16)
        if n:
            return f"v_mfma_f32_32x32x16_bf16 {d}, {vr(K2F, 4)}, {vr(QF2, 4)}, {d}"
        return f"v_mfma_f32_32x32x16_bf16 {d}, {vr(KF, 4)}, {vr(QF1, 4)}, {c if c else vr(NEGM, 16)}"

    rare = []

    def iteration(t):
        S, Sn = (SA, SB) if t % 2 == 0 else (SB, SA)
        mx = tile_max_ops(S)
        a("s_waitcnt lgkmcnt(2)")
        for k in range(8):
            if k % 4 == 0 and 'bnomfma' not in ABL:
                a(pv_mfma(k // 4))
            if 'bnomax' not in ABL:
                a(mx[k])
        if 'bnods' not in ABL:
            read_V(t)
        if 'bnomax' not in ABL:
            a(f"v_cmp_lt_f32 vcc, 0x41000000, v{VT1}")
            a(f"s_cbranch_vccnz L_{name}_rs{t}")
        a.label(f"L_{name}_ct{t}")
        rare.append((S, t))
        a("s_waitcnt lgkmcnt(2)")
        for k in range(16):
            if k % 8 == 0 and 'bnomfma' not in ABL:
                a(qk_mfma(Sn, k // 8))
            if 'bnoexp' not in ABL:
                a(f"v_exp_f32 v{S + k}, v{S + k}")
        if 'bnods' not in ABL:
            read_K(t + 2)
        for k in range(8):
            if 'bnocvt' not in ABL:
                a(f"v_cvt_pk_bf16_f32 v{PF + k}, v{S + 2 * k}, v{S + 2 * k + 1}")

    read_K(0)
    a("s_waitcnt lgkmcnt(0)")
    a(qk_mfma(SA, 0, "0"))
    a(qk_mfma(SA, 1))
    read_V(0)
    read_K(1)
    a("s_nop 15")
    for op in tile_max_ops(SA):
        a(op)
    cross_half_max()
    for k in range(16):
        a(f"v_sub_f32 v{SA + k}, v{SA + k}, v{VT1}")
    for r in range(16):
        a(f"v_sub_f32 v{NEGM + r}, 0, v{VT1}")
    a("s_mov_b32 s58, 0")
    a("s_mov_b32 s59, 0")
    a.label(f"L_{name}_loop")
    for t in range(16):
        iteration(t)
        if t == 1:
            a("s_barrier")
            a("s_cmp_eq_u32 s58, 0")
            a(f"s_cbranch_scc1 L_{name}_nf")
            a("s_cmp_eq_u32 s58, 3")
            a(f"s_cbranch_scc1 L_{name}_nf")
            issue_chunk("s59")
            a.label(f"L_{name}_nf")
        if t == 13:
            a("s_waitcnt vmcnt(0)")
            a("s_barrier")
    for (x, y) in (("v5", "v120"), ("v6", "v121"), ("v7", "v122")):
        a(f"v_swap_b32 {x}, {y}")
    a("s_and_b32 s59, s58, 1")
    a(f"s_mul_i32 s59, s59, {B_BUF}")
    a("s_add_u32 s58, s58, 1")
    a("s_cmp_lt_u32 s58, 4")
    a(f"s_cbranch_scc1 L_{name}_loop")
    a("s_waitcnt lgkmcnt(0)")
    a("s_nop 0")
    a(pv_mfma(0))
    a(pv_mfma(1))
    a(f"s_branch L_{name}_fin")
    for (S, t) in rare:
        a.label(f"L_{name}_rs{t}")
        a("s_nop 15")
        cross_half_max()
        a(f"v_max_f32 v{VT1}, 0, v{VT1}")
        a(f"v_sub_f32 v{VAL}, 0, v{VT1}")
        a(f"v_exp_f32 v{VAL}, v{VAL}")
        for k in range(16):
            a(f"v_sub_f32 v{S + k}, v{S + k}, v{VT1}")
        for r in range(16):
            a(f"v_sub_f32 v{NEGM + r}, v{NEGM + r}, v{VT1}")
        for r in range(12):
            a(f"v_mul_f32 v{OA + r}, v{OA + r}, v{VAL}")
        a("s_nop 1")
        a(f"s_branch L_{name}_ct{t}")
    a.label(f"L_{name}_fin")
    a("s_nop 15")
    a("s_nop 7")
    a(f"v_mov_b32 v{VT1}, v{OA + 10}")
    a(f"v_mov_b32 v{VT2}, v{OA + 10}")
    a("s_nop 1")
    a(f"v_permlane32_swap_b32 v{VT1}, v{VT2}")
    a("s_nop 1")
    a(f"v_rcp_f32 v{VT1}, v{VT1}")
    a("s_nop 0")
    for r in range(12):
        a(f"v_mul_f32 v{OA + r}, v{OA + r}, v{VT1}")
    for k in range(6):
        a(f"v_cvt_pk_bf16_f32 v{PF + k}, v{OA + 2 * k}, v{OA + 2 * k + 1}")
    a("v_mul_u32_u24 v4, 1152, v2")
    a("v_lshl_add_u32 v4, v3, 3, v4")
    a("s_mul_i32 s60, s32, 36")
    a(f"s_add_u32 s60, s60, {O_OFF}")
    a(f"buffer_store_dword v{PF}, v4, s[4:7], s60 offen")
    a(f"buffer_store_dword v{PF + 1}, v4, s[4:7], s60 offen offset:4")
    a(f"buffer_store_dword v{PF + 2}, v4, s[4:7], s60 offen offset:16")
    a(f"buffer_store_dword v{PF + 3}, v4, s[4:7], s60 offen offset:20")
    a("v_cmp_gt_u32 vcc, 32, v0")
    a("s_and_saveexec_b64 s[44:45], vcc")
    a(f"buffer_store_dword v{PF + 4}, v4, s[4:7], s60 offen offset:32")
    a("s_endpgm")


def gen_k2(a, name):
    kernel_begin(a, name)
    a(f"s_cmp_ge_u32 s2, {256 if 'attonly' in ABL else 256 + 144}")
    a(f"s_cbranch_scc1 L_{name}_end")
    wave_setup(a)
    a("s_cmp_lt_u32 s2, 256")
    a(f"s_cbranch_scc0 L_{name}_gemm")
    attn_role(a, name)
    a.label(f"L_{name}_gemm")
    gemm_phase(a, name, "fin")
    a.label(f"L_{name}_end")
    a("s_endpgm")
    kernel_desc(a, name, 128, 102)


def gen_k3(a, name):
    kernel_begin(a, name)
    a("s_cmp_ge_u32 s2, 384")
    a(f"s_cbranch_scc1 L_{name}_end")
    wave_setup(a)
    gemm_phase(a, name, "wo")
    a.label(f"L_{name}_end")
    a("s_endpgm")
    kernel_desc(a, name, 208, 102)


def gen_reduce(a, name):
    kernel_begin(a, name)
    a("s_cmp_ge_u32 s2, 512")
    a(f"s_cbranch_scc1 L_{name}_end")
    a(f"s_load_dwordx2 s[24:25], s[0:1], {ARG_WS}")
    a(f"s_load_dwordx2 s[26:27], s[0:1], {ARG_X}")
    a(f"s_load_dwordx2 s[28:29], s[0:1], {ARG_GW}")
    a(f"s_load_dwordx2 s[30:31], s[0:1], {ARG_OUT}")
    a("v_lshrrev_b32 v1, 6, v0")
    a("v_and_b32 v0, 63, v0")
    a("s_nop 0")
    a("v_readfirstlane_b32 s36, v1")
    a("s_lshl_b32 s37, s2, 2")
    a("s_add_u32 s37, s37, s36")
    a("s_waitcnt lgkmcnt(0)")
    make_srd(a, 4, 24, None, WS_SIZE)
    make_srd(a, 8, 26, None, 2048 * 1152)
    make_srd(a, 12, 28, None, 1152)
    make_srd(a, 16, 30, None, 2048 * 1152)
    a("v_lshlrev_b32 v1, 3, v0")
    a("v_lshlrev_b32 v2, 4, v0")
    a("s_mul_i32 s38, s37, 1152")
    a("s_mul_i32 s39, s37, 2304")
    a("s_mov_b32 s57, 0xffff0000")
    a("v_cmp_gt_u32 s[40:41], 16, v0")
    for c in range(3):
        if c == 2:
            a("s_mov_b64 s[42:43], exec")
            a("s_mov_b64 exec, s[40:41]")
        a(f"buffer_load_dwordx2 {vr(4 + 2 * c, 2)}, v1, s[8:11], s38 offen offset:{512 * c}")
        a(f"buffer_load_dwordx2 {vr(10 + 2 * c, 2)}, v1, s[12:15], 0 offen offset:{512 * c}")
        if c == 2:
            a("s_mov_b64 exec, s[42:43]")
    for c in range(3):
        if c == 2:
            a("s_mov_b64 exec, s[40:41]")
        for sp in range(5):
            a(f"s_add_u32 s44, s39, {P_OFF + sp * P_STRIDE}")
            a(f"buffer_load_dwordx4 {vr(32 + (c * 5 + sp) * 4, 4)}, v2, s[4:7], s44 offen offset:{1024 * c}")
        if c == 2:
            a("s_mov_b64 exec, s[42:43]")
    a("v_mov_b32 v16, 0")
    a("s_waitcnt vmcnt(15)")
    for c in range(3):
        if c == 2:
            a("s_mov_b64 exec, s[40:41]")
        for h in range(2):
            xr, gr = 4 + 2 * c + h, 10 + 2 * c + h
            a(f"v_lshlrev_b32 v17, 16, v{xr}")
            a(f"v_and_b32 v18, s57, v{xr}")
            a(f"v_lshlrev_b32 v19, 16, v{gr}")
            a(f"v_and_b32 v20, s57, v{gr}")
            a("v_mul_f32 v17, v17, v19")
            a("v_mul_f32 v18, v18, v20")
            a("v_cvt_pk_bf16_f32 v17, v17, v18")
            a("v_lshlrev_b32 v18, 16, v17")
            a("v_and_b32 v17, s57, v17")
            a("v_add_f32 v16, v16, v18")
            a("v_add_f32 v16, v16, v17")
        if c == 2:
            a("s_mov_b64 exec, s[42:43]")
    for m in (1, 2, 4, 8, 16):
        a(f"ds_swizzle_b32 v17, v16 offset:0x{(m << 10) | 0x1f:04x}")
        a("s_waitcnt lgkmcnt(0)")
        a("v_add_f32 v16, v16, v17")
    a("v_mov_b32 v17, v16")
    a("s_nop 1")
    a("v_permlane32_swap_b32 v16, v17")
    a("s_nop 1")
    a("v_add_f32 v16, v16, v17")
    a("v_cvt_pk_bf16_f32 v16, v16, v16")
    a("v_and_b32 v16, s57, v16")
    a("v_mul_f32 v16, 0xbfb8aa3b, v16")
    a("v_exp_f32 v16, v16")
    a("s_nop 0")
    a("v_add_f32 v16, 1.0, v16")
    a("v_rcp_f32 v16, v16")
    a("s_nop 0")
    a("v_cvt_pk_bf16_f32 v16, v16, v16")
    a("v_and_b32 v16, s57, v16")
    a("v_sub_f32 v17, 1.0, v16")
    a("v_cvt_pk_bf16_f32 v17, v17, v17")
    a("v_and_b32 v17, s57, v17")
    a("s_waitcnt vmcnt(0)")
    for c in range(3):
        for r in range(4):
            b0 = 32 + (c * 5) * 4 + r
            a(f"v_add_f32 v{b0}, v{b0}, v{b0 + 4}")
            a(f"v_add_f32 v{b0 + 8}, v{b0 + 8}, v{b0 + 12}")
            a(f"v_add_f32 v{b0}, v{b0}, v{b0 + 8}")
            a(f"v_cvt_pk_bf16_f32 v18, v{b0}, v{b0 + 16}")
            a("v_lshlrev_b32 v19, 16, v18")
            a("v_and_b32 v18, s57, v18")
            a("v_mul_f32 v18, v18, v16")
            a("v_mul_f32 v19, v19, v17")
            a("v_cvt_pk_bf16_f32 v18, v18, v19")
            a("v_lshlrev_b32 v19, 16, v18")
            a("v_and_b32 v18, s57, v18")
            a(f"v_add_f32 v{b0}, v18, v19")
        b0 = 32 + (c * 5) * 4
        a(f"v_cvt_pk_bf16_f32 v{20 + 2 * c}, v{b0}, v{b0 + 1}")
        a(f"v_cvt_pk_bf16_f32 v{21 + 2 * c}, v{b0 + 2}, v{b0 + 3}")
    for c in range(3):
        if c == 2:
            a("s_mov_b64 exec, s[40:41]")
        a(f"buffer_store_dwordx2 {vr(20 + 2 * c, 2)}, v1, s[16:19], s38 offen offset:{512 * c}")
    a.label(f"L_{name}_end")
    a("s_endpgm")
    kernel_desc(a, name, 96)


def main():
    hdr = open("cdna_kernels/" + KNAME + ".s.ref").read().split("\n")
    out = []
    for ln in hdr:
        if ln.startswith("; @launch"):
            break
        out.append(ln)
    k_k1 = "gm_k1_kernel"
    k_k2 = "gm_k2_kernel"
    k_k3 = KNAME + "_kernel"
    out.append(f"; @launch kernel={k_k1} grid=(256,1,1) block=(512,1,1) lds={K1_LDS}")
    out.append(f"; @launch kernel={k_k2} grid=(400,1,1) block=(512,1,1) lds={K2_LDS}")
    out.append(f"; @launch kernel={k_k3} grid=(384,1,1) block=(256,1,1) lds={gemm_lds('wo')}")
    out.append('.amdgcn_target "amdgcn-amd-amdhsa--gfx950"')
    a = Asm()
    gen_k1(a, k_k1)
    gen_k2(a, k_k2)
    gen_k3(a, k_k3)
    txt = "\n".join(out) + "\n" + a.text()
    dst = sys.argv[1] if len(sys.argv) > 1 else "cdna_kernels/" + KNAME + ".s"
    open(dst, "w").write(txt)
    print("wrote", dst, len(txt))


if __name__ == "__main__":
    main()
```
